```python
import torch

def _softmax(x, axis=-1):
    return torch.softmax(x, dim=axis)
def _gelu(x):
    return torch.nn.functional.gelu(x, approximate="tanh")
def _silu(x):
    return torch.nn.functional.silu(x)
def _sigmoid(x):
    return torch.sigmoid(x)
def _layernorm(x, axis=-1, eps=1e-5):
    m = x.mean(dim=axis, keepdim=True)
    v = x.var(dim=axis, keepdim=True, unbiased=False)
    return (x - m) / torch.sqrt(v + eps)
def _scatter_add(tgt, idx, src, axis=0):
    return tgt.clone().index_add_(axis, idx, src)
def _segment_sum(src, seg, n):
    out = torch.zeros((n,) + src.shape[1:], dtype=src.dtype)
    return out.index_add_(0, seg, src)
def _pad(x, pw):
    flat = tuple(v for pair in reversed(pw) for v in pair)
    return torch.nn.functional.pad(x, flat)

kernel_name = 'concat_heads__gqa_block_cached__mha_block_cached__near_ridge'

def setup_inputs():

    _w = (lambda a: (lambda t: t.to(torch.bfloat16) if t.is_floating_point() else t)(torch.as_tensor(a)))
    def _A_setup():
        B, Sq, D = 16, 32, 1024
        Hq, Hkv, Sk, Dh = 32, 4, 32, 128
        assert Hq % Hkv == 0, (Hq, Hkv)
        return {
            "x": _w((lambda *s: torch.randn(*s, dtype=torch.bfloat16) * 0.8)(B, Sq, D)),
            "k_cache": _w((lambda *s: torch.randn(*s, dtype=torch.bfloat16) * 0.8)(B, Hkv, Sk, Dh)),
            "v_cache": _w((lambda *s: torch.randn(*s, dtype=torch.bfloat16) * 0.05)(B, Hkv, Sk, Dh)),
            "wq": _w((lambda *s: torch.randn(*s, dtype=torch.bfloat16) * 0.8)(D, Hq * Dh) * (D ** -0.5)),
            "wo": _w((lambda *s: torch.randn(*s, dtype=torch.bfloat16) * 0.05)(Hq * Dh, D) * ((Hq * Dh) ** -0.5)),
        }
    _A_in = _A_setup()

    def _B_setup():
        B, Sq, D = 16, 32, 1024
        H, Sk, Dh = 32, 32, 128
        return {
            "x": _w((lambda *s: torch.randn(*s, dtype=torch.bfloat16) * 0.8)(B, Sq, D)),
            "k_cache": _w((lambda *s: torch.randn(*s, dtype=torch.bfloat16) * 0.8)(B, H, Sk, Dh)),
            "v_cache": _w((lambda *s: torch.randn(*s, dtype=torch.bfloat16) * 0.05)(B, H, Sk, Dh)),
            "wq": _w((lambda *s: torch.randn(*s, dtype=torch.bfloat16) * 0.8)(D, H * Dh) * (D ** -0.5)),
            "wo": _w((lambda *s: torch.randn(*s, dtype=torch.bfloat16) * 0.05)(H * Dh, D) * ((H * Dh) ** -0.5)),
        }
    _B_in = _B_setup()

    return {
        "A_x": _A_in["x"],
        "A_k_cache": _A_in["k_cache"],
        "A_v_cache": _A_in["v_cache"],
        "A_wq": _A_in["wq"],
        "A_wo": _A_in["wo"],
        "B_x": _B_in["x"],
        "B_k_cache": _B_in["k_cache"],
        "B_v_cache": _B_in["v_cache"],
        "B_wq": _B_in["wq"],
        "B_wo": _B_in["wo"],
    }

def reference(A_x, A_k_cache, A_v_cache, A_wq, A_wo, B_x, B_k_cache, B_v_cache, B_wq, B_wo):
    def _A_ref(x, k_cache, v_cache, wq, wo):
        B, Sq, D = x.shape
        Hq, Dh = 32, 128
        Hkv = k_cache.shape[1]
        rep = Hq // Hkv
        q = (lambda x, *d: x.permute(*d))((x @ wq).reshape(B, Sq, Hq, Dh), 0, 2, 1, 3)
        k = (lambda x, n, axis: torch.repeat_interleave(x, n, dim=axis))(k_cache, rep, axis=1)
        v = (lambda x, n, axis: torch.repeat_interleave(x, n, dim=axis))(v_cache, rep, axis=1)
        scores = torch.einsum("bhqd,bhkd->bhqk", q, k) * (Dh ** -0.5)
        p = _softmax(scores, axis=-1)
        o = torch.einsum("bhqk,bhkd->bhqd", p, v)
        return (lambda x, *d: x.permute(*d))(o, 0, 2, 1, 3).reshape(B, Sq, Hq * Dh) @ wo

    def _B_ref(x, k_cache, v_cache, wq, wo):
        B, Sq, D = x.shape
        H, Dh = 32, 128
        q = (lambda x, *d: x.permute(*d))((x @ wq).reshape(B, Sq, H, Dh), 0, 2, 1, 3)
        scores = torch.einsum("bhqd,bhkd->bhqk", q, k_cache) * (Dh ** -0.5)
        p = _softmax(scores, axis=-1)
        o = torch.einsum("bhqk,bhkd->bhqd", p, v_cache)
        return (lambda x, *d: x.permute(*d))(o, 0, 2, 1, 3).reshape(B, Sq, H * Dh) @ wo

    a = _A_ref(A_x, A_k_cache, A_v_cache, A_wq, A_wo)
    b = _B_ref(B_x, B_k_cache, B_v_cache, B_wq, B_wo)
    return torch.concatenate([a, b], axis=-1)
```

```python
import sys, math
NAME = "concat_heads__gqa_block_cached__mha_block_cached__near_ridge"
HDR = open("cdna_kernels/%s.s.ref" % NAME).read().split("; @launch")[0]

def gen(S=4, L=2, ntw="nt", ntx="", ntk="nt", stamps=False, rot=True):
    o = []
    def A(s):
        for l in s.split("\n"): o.append("    " + l.strip() if not l.strip().endswith(":") else l.strip())
    KBASE = S * 32768
    LDS = KBASE + 32768
    PART = 1 << 22
    STAMP = 1 << 26
    nst = [0]
    def stamp():
        if stamps:
            A(f"s_memrealtime s[{60+2*nst[0]}:{61+2*nst[0]}]\ns_waitcnt lgkmcnt(0)")
            nst[0] += 1
    def stamp_store(role):
        if stamps:
            A(f"s_lshl_b32 s3, s2, 10\ns_lshl_b32 s4, s16, 7\ns_add_u32 s3, s3, s4\ns_add_u32 s3, s3, {STAMP}\nv_mov_b32 v1, 0")
            for i in range(nst[0]):
                A(f"v_mov_b32 v2, s{60+2*i}\nbuffer_store_dword v2, v1, s[44:47], s3 offen offset:{4*i}")
            A("s_waitcnt vmcnt(0)")
    o.append(HDR + f"; @launch grid=(256,1,1) block=(512,1,1) lds={LDS}")
    o.append(f'.amdgcn_target "amdgcn-amd-amdhsa--gfx950"\n.text\n.globl {NAME}_kernel\n.p2align 8\n.type {NAME}_kernel,@function\n{NAME}_kernel:')
    A("s_cmp_ge_u32 s2, 256\ns_cbranch_scc1 L_end")
    A("s_bfe_u32 s17, s2, 0x10002\ns_and_b32 s18, s2, 3\ns_lshr_b32 s19, s2, 6\ns_bfe_u32 s20, s2, 0x30003")
    A("s_mul_i32 s3, s17, 40\ns_add_u32 s4, s0, s3\ns_addc_u32 s5, s1, 0")
    A("s_load_dwordx8 s[24:31], s[4:5], 0\ns_load_dwordx2 s[32:33], s[4:5], 32\ns_load_dwordx4 s[36:39], s[0:1], 80\ns_load_dwordx2 s[44:45], s[0:1], 96")
    A("v_lshrrev_b32 v1, 6, v0\nv_and_b32 v0, 63, v0\nv_readfirstlane_b32 s16, v1")
    if rot: A("s_lshl_b32 s21, s19, 1\ns_add_u32 s21, s21, s20\ns_and_b32 s21, s21, 7")
    else: A("s_mov_b32 s21, 0")
    A("s_mov_b32 s46, 0x10000000\ns_mov_b32 s47, 0x20000")
    A("s_cmp_ge_u32 s16, 4\ns_cbranch_scc0 L_compute")
    A("s_and_b32 s22, s16, 3")
    A("s_lshl_b32 s23, s19, 2\ns_add_u32 s23, s23, s22")
    A("s_lshl_b32 s34, s18, 3\ns_add_u32 s34, s34, s20")
    A("v_lshrrev_b32 v1, 3, v0\nv_lshrrev_b32 v2, 4, v0\nv_and_b32 v3, 7, v0\nv_xor_b32 v3, v3, v2\nv_lshlrev_b32 v3, 4, v3")
    A("v_xor_b32 v4, 64, v3")
    A("v_and_b32 v5, 15, v0\nv_lshlrev_b32 v6, 2, v2\nv_xor_b32 v6, v5, v6\nv_lshlrev_b32 v6, 4, v6")
    A("s_lshl_b32 s3, s23, 16")
    A("v_lshl_add_u32 v7, v1, 11, s3")
    for jj in range(4): A(f"v_add_u32 v{8+jj}, {jj*(16384-1024)}, v7\nv_add_u32 v{8+jj}, v{8+jj}, v{3+(jj&1)}")
    A("s_lshl_b32 s3, s22, 17\ns_lshl_b32 s4, s34, 8\ns_add_u32 s3, s3, s4\nv_lshl_add_u32 v7, v2, 13, s3\nv_add_u32 v7, v7, v6")
    for jj in range(4): A(f"v_add_u32 v{12+jj}, {jj*(32768-1024)}, v7")
    A("s_waitcnt lgkmcnt(0)")
    A("s_mov_b32 s4, s24\ns_and_b32 s5, s25, 0xffff\ns_mov_b32 s6, 0x100000\ns_mov_b32 s7, 0x20000")
    A("s_mov_b32 s8, s30\ns_and_b32 s9, s31, 0xffff\ns_mov_b32 s10, 0x800000\ns_mov_b32 s11, 0x20000")
    A("s_lshl_b32 s40, s21, 1")
    A("s_lshl_b32 s41, s22, 12")
    A(f"s_add_u32 s57, s41, {S*32768}")
    A("s_mov_b32 s56, s41")
    def issue(ph):
        if ph == 1:
            A("s_lshl_b32 s42, s40, 19\ns_lshl_b32 s43, s40, 7")
            w, x, wv, xv = "s[8:11]", "s[4:7]", 12, 8
        else:
            A("s_lshl_b32 s42, s40, 17\ns_lshr_b32 s43, s40, 1\ns_mul_i32 s43, s43, s35\ns_and_b32 s3, s40, 1\ns_lshl_b32 s3, s3, 7\ns_add_u32 s43, s43, s3")
            w, x, wv, xv = "s[52:55]", "s[48:51]", 20, 16
        A("s_mov_b32 m0, s41\ns_add_u32 s3, s41, 16384")
        for jj in range(4): A(f"buffer_load_dwordx4 v{wv+jj}, {w}, s42 offen offset:{jj*1024} {ntw} lds")
        A("s_mov_b32 m0, s3\ns_add_u32 s40, s40, 1")
        for jj in range(4): A(f"buffer_load_dwordx4 v{xv+jj}, {x}, s43 offen offset:{jj*1024} {ntx if ph==1 else ntk} lds")
        A("s_and_b32 s40, s40, 15\ns_add_u32 s41, s41, 32768\ns_cmp_ge_u32 s41, s57\ns_cselect_b32 s41, s56, s41")
    stamp()
    for t in range(L): issue(1)
    A("s_cmp_eq_u32 s17, 0\ns_cselect_b32 s35, 0, 8192\ns_cselect_b32 s14, 19, 22\ns_cselect_b32 s58, 15, 18\ns_cselect_b32 s59, 13, 16")
    A("s_lshl_b32 s14, 1, s14\ns_mov_b32 s12, s26\ns_and_b32 s13, s27, 0xffff\ns_mov_b32 s15, 0x20000")
    A("s_mov_b32 s48, s28\ns_and_b32 s49, s29, 0xffff\ns_mov_b32 s50, s14\ns_mov_b32 s51, 0x20000")
    A("s_mov_b32 s52, s32\ns_and_b32 s53, s33, 0xffff\ns_mov_b32 s54, 0x800000\ns_mov_b32 s55, 0x20000")
    A("s_lshl_b32 s58, s23, s58\ns_lshl_b32 s59, s18, s59\ns_add_u32 s58, s58, s59")
    A("v_lshl_add_u32 v7, v1, 8, s58")
    for jj in range(4): A(f"v_add_u32 v{16+jj}, {jj*(2048-1024)}, v7\nv_add_u32 v{16+jj}, v{16+jj}, v{3+(jj&1)}")
    A("s_lshl_b32 s3, s18, 21\ns_lshl_b32 s59, s22, 15\ns_add_u32 s3, s3, s59\ns_lshl_b32 s59, s20, 8\ns_add_u32 s3, s3, s59\nv_lshl_add_u32 v7, v2, 11, s3\nv_add_u32 v7, v7, v6")
    for jj in range(4): A(f"v_add_u32 v{20+jj}, {jj*(8192-1024)}, v7")
    A("s_mul_i32 s59, s20, s35\ns_add_u32 s58, s58, s59\nv_lshl_add_u32 v7, v2, 8, s58\nv_xor_b32 v5, v5, v2\nv_lshlrev_b32 v5, 4, v5")
    for jj in range(4): A(f"v_xor_b32 v{24+jj}, {jj*64}, v5\nv_add_u32 v{24+jj}, v{24+jj}, v7")
    A(f"s_waitcnt vmcnt({8*(L-1)})")
    stamp()
    A("s_barrier")
    A(f"s_mov_b32 s58, {16-L}\nL_ld1:")
    issue(1)
    A(f"s_waitcnt vmcnt({8*(L-1)})\ns_barrier\ns_sub_u32 s58, s58, 1\ns_cmp_lg_u32 s58, 0\ns_cbranch_scc1 L_ld1")
    stamp()
    A(f"s_lshl_b32 s3, s22, 13\ns_add_u32 s3, s3, {KBASE}\ns_mov_b32 m0, s3\ns_add_u32 s3, s3, 4096\ns_movk_i32 s58, 4096")
    for jj in range(4): A(f"buffer_load_dwordx4 v{24+jj}, s[12:15], 0 offen offset:{jj*1024} {ntk} lds")
    A("s_mov_b32 m0, s3\ns_nop 0")
    for jj in range(4): A(f"buffer_load_dwordx4 v{24+jj}, s[12:15], s58 offen offset:{jj*1024} {ntk} lds")
    for t in range(L-1):
        issue(2); A(f"s_waitcnt vmcnt({8*L})\ns_barrier")
    A(f"s_mov_b32 s58, {16-(L-1)}\nL_ld2:")
    issue(2)
    A(f"s_waitcnt vmcnt({8*(L-1)})\ns_barrier\ns_sub_u32 s58, s58, 1\ns_cmp_lg_u32 s58, 0\ns_cbranch_scc1 L_ld2")
    for t in range(L-2, -1, -1): A(f"s_waitcnt vmcnt({8*t})\ns_barrier")
    stamp()
    if stamps: A("s_and_b32 s45, s45, 0xffff")
    stamp_store(1)
    A("s_endpgm")
    nst[0] = 0
    A("L_compute:")
    ACC, OUT, HELD, WF, XF, PF = 64, 128, 192, 16, 48, 56
    A("v_lshrrev_b32 v10, 5, v0\nv_bfe_u32 v11, v0, 2, 2\nv_bfe_u32 v12, v0, 4, 1\nv_and_b32 v13, 1, v0\nv_bfe_u32 v14, v0, 1, 1")
    A("v_lshl_add_u32 v15, v10, 3, v11\nv_lshlrev_b32 v15, 8, v15\nv_lshl_add_u32 v15, v11, 6, v15\nv_lshl_add_u32 v15, v12, 5, v15\nv_lshl_add_u32 v15, v13, 4, v15\nv_lshl_add_u32 v2, v14, 3, v15")
    for b in range(1, 4): A(f"v_xor_b32 v{2+b}, {b*64}, v2")
    A("v_and_b32 v11, 31, v0\nv_bfe_u32 v12, v0, 1, 3\nv_xor_b32 v12, v12, v10\nv_lshlrev_b32 v12, 4, v12\nv_lshl_add_u32 v12, v11, 7, v12")
    A("s_lshl_b32 s3, s16, 12\ns_add_u32 s3, s3, 16384\nv_add_u32 v6, s3, v12")
    for s in range(1, 4): A(f"v_xor_b32 v{6+s}, {s*32}, v6")
    A("v_lshlrev_b32 v1, 4, v0")
    for r in range(64): A(f"v_mov_b32 v{ACC+r}, 0")
    A("s_lshl_b32 s23, s19, 2\ns_add_u32 s23, s23, s16")
    A("s_waitcnt lgkmcnt(0)")
    A("s_lshl_b32 s24, s17, 4\ns_add_u32 s24, s24, s23\ns_lshl_b32 s24, s24, 2\ns_add_u32 s24, s24, s18\ns_lshl_b32 s24, s24, 14")
    A("s_lshl_b32 s25, s17, 2\ns_add_u32 s25, s25, s18\ns_lshl_b32 s25, s25, 2\ns_add_u32 s25, s25, s19\ns_lshl_b32 s25, s25, 3")
    A("s_and_b32 s45, s45, 0xffff")
    A("s_mov_b32 s8, s38\ns_and_b32 s9, s39, 0xffff\ns_movk_i32 s10, 256\ns_mov_b32 s11, 0x20000")
    A("s_mov_b32 s12, s36\ns_and_b32 s13, s37, 0xffff\ns_mov_b32 s14, 0x200000\ns_mov_b32 s15, 0x20000")
    A("s_mov_b32 s26, 0")
    def rd_w(s, b, buf):
        A(f"ds_read_b64_tr_b16 v[{WF+16*buf+4*b}:{WF+16*buf+4*b+1}], v{2+b} offset:{s*4096}")
        A(f"ds_read_b64_tr_b16 v[{WF+16*buf+4*b+2}:{WF+16*buf+4*b+3}], v{2+b} offset:{s*4096+1024}")
    def rd_x(s, buf): A(f"ds_read_b128 v[{XF+4*buf}:{XF+4*buf+3}], v{6+s}")
    def mf(ph, b, buf, first):
        w = f"v[{WF+16*buf+4*b}:{WF+16*buf+4*b+3}]"; x = f"v[{XF+4*buf}:{XF+4*buf+3}]"; a = f"v[{ACC+16*b}:{ACC+16*b+15}]"
        c = "0" if first else a
        A(f"v_mfma_f32_32x32x16_bf16 {a}, {w}, {x}, {c}" if ph == 1 else f"v_mfma_f32_32x32x16_bf16 {a}, {x}, {w}, {c}")
    def tile(ph, first=False, extra=None, prebar=None, postbar=None):
        extra = extra or {}
        for s in range(3):
            buf = s & 1
            for b in range(4):
                A(f"s_waitcnt lgkmcnt({6 if b == 0 else 7})")
                mf(ph, b, buf, first and s == 0)
                if b == 0: rd_x(s+1, buf ^ 1)
                rd_w(s+1, b, buf ^ 1)
                if (s, b) in extra: A(extra[(s, b)])
                if s == 2 and b == 0: A(f"s_add_u32 s26, s26, 1\ns_cmp_eq_u32 s26, {S}\ns_cselect_b32 s26, 0, s26\ns_cselect_b32 s27, {-(S-1)*32768 & 0xffffffff}, s28")
        A("s_waitcnt lgkmcnt(6)"); mf(ph, 0, 1, False)
        for r in range(2, 6): A(f"v_add_u32 v{r}, s27, v{r}")
        A("s_waitcnt lgkmcnt(4)"); mf(ph, 1, 1, False)
        for r in range(6, 10): A(f"v_add_u32 v{r}, s27, v{r}")
        A("s_waitcnt lgkmcnt(0)")
        if prebar: A(prebar)
        A("s_barrier")
        rd_x(0, 0); rd_w(0, 0, 0)
        mf(ph, 2, 1, False)
        rd_w(0, 1, 0); rd_w(0, 2, 0)
        mf(ph, 3, 1, False)
        rd_w(0, 3, 0)
        if postbar: A(postbar)
    A("s_mov_b32 s28, 32768")
    stamp()
    A("s_barrier")
    stamp()
    rd_x(0, 0)
    for b in range(4): rd_w(0, b, 0)
    A("s_mov_b32 s29, 16\nL_p1:")
    tile(1)
    A("s_sub_u32 s29, s29, 1\ns_cmp_lg_u32 s29, 0\ns_cbranch_scc1 L_p1")
    stamp()
    KF, SA, PP = 128, 160, 176
    A(f"v_and_b32 v11, 31, v0\nv_and_b32 v12, 15, v0\nv_lshrrev_b32 v10, 5, v0\nv_xor_b32 v12, v12, v10\nv_lshlrev_b32 v12, 4, v12\nv_lshl_add_u32 v12, v11, 8, v12")
    A(f"s_lshl_b32 s3, s16, 13\ns_add_u32 s3, s3, {KBASE}\nv_add_u32 v12, s3, v12\ns_waitcnt lgkmcnt(0)")
    for ks in range(8): A(f"v_xor_b32 v13, {ks*32}, v12\nds_read_b128 v[{KF+4*ks}:{KF+4*ks+3}], v13")
    for i in range(32): A(f"v_cvt_pk_bf16_f32 v{HELD+i}, v{ACC+2*i}, v{ACC+2*i+1}")
    A("s_waitcnt lgkmcnt(0)\ns_nop 0")
    for ks in range(8):
        A(f"v_mfma_f32_32x32x16_bf16 v[{SA}:{SA+15}], v[{KF+4*ks}:{KF+4*ks+3}], v[{HELD+4*ks}:{HELD+4*ks+3}], " + ("0" if ks == 0 else f"v[{SA}:{SA+15}]"))
    import struct
    c = struct.unpack("<I", struct.pack("<f", math.log2(math.e) / math.sqrt(128.0)))[0]
    A(f"s_mov_b32 s30, {c:#x}\ns_lshl_b32 s3, s20, 11\ns_add_u32 s3, s3, s24")
    for r in range(16): A(f"v_mov_b32 v{OUT+r}, 0")
    A(f"v_max3_f32 v10, v{SA}, v{SA+1}, v{SA+2}")
    for r in range(3, 15, 2): A(f"v_max3_f32 v10, v10, v{SA+r}, v{SA+r+1}")
    A(f"v_max_f32 v10, v10, v{SA+15}\nv_mov_b32 v11, v10\ns_nop 1\nv_permlane32_swap_b32 v10, v11\ns_nop 1\nv_max_f32 v10, v10, v11\nv_mul_f32 v10, s30, v10")
    for r in range(16): A(f"v_fma_f32 v{SA+r}, v{SA+r}, s30, -v10")
    for r in range(16): A(f"v_exp_f32 v{SA+r}, v{SA+r}")
    A(f"s_nop 0\nv_add_f32 v10, v{SA}, v{SA+1}\nv_add_f32 v11, v{SA+2}, v{SA+3}")
    for r in range(4, 16, 2): A(f"v_add_f32 v10, v10, v{SA+r}\nv_add_f32 v11, v11, v{SA+r+1}")
    A("v_add_f32 v10, v10, v11\nv_mov_b32 v11, v10\ns_nop 1\nv_permlane32_swap_b32 v10, v11\ns_nop 1\nv_add_f32 v10, v10, v11\nv_rcp_f32 v10, v10\ns_nop 0")
    for r in range(16): A(f"v_mul_f32 v{SA+r}, v{SA+r}, v10")
    for i in range(8): A(f"v_cvt_pk_bf16_f32 v{PF+i}, v{SA+2*i}, v{SA+2*i+1}")
    A(f"buffer_store_dwordx4 v[{PF}:{PF+3}], v1, s[44:47], s3 offen sc1\nbuffer_store_dwordx4 v[{PF+4}:{PF+7}], v1, s[44:47], s3 offen offset:1024 sc1")
    for r in range(16, 64): A(f"v_mov_b32 v{OUT+r}, 0")
    stamp()
    def cvt(b, half, slot): return "\n".join(f"v_cvt_pk_bf16_f32 v{HELD+32*slot+8*b+4*half+i}, v{ACC+16*b+8*half+2*i}, v{ACC+16*b+8*half+2*i+1}" for i in range(4))
    def pm(b, s, slot, pf=PF): A(f"v_mfma_f32_32x32x16_bf16 v[{OUT+16*b}:{OUT+16*b+15}], v[{HELD+32*slot+8*b+4*s}:{HELD+32*slot+8*b+4*s+3}], v[{pf+4*s}:{pf+4*s+3}], v[{OUT+16*b}:{OUT+16*b+15}]")
    def pload(pf): return (f"s_lshl_b32 s3, s31, 11\ns_add_u32 s3, s3, s24\ns_add_u32 s31, s31, 1\ns_and_b32 s31, s31, 7\n"
                           f"buffer_load_dwordx4 v[{pf}:{pf+3}], v1, s[44:47], s3 offen sc1\nbuffer_load_dwordx4 v[{pf+4}:{pf+7}], v1, s[44:47], s3 offen offset:1024 sc1")
    A("s_mov_b32 s31, s21\nv_mov_b32 v14, s25\nv_mov_b32 v15, 1\ns_add_u32 s34, s25, s20\nv_mov_b32 v13, s34")
    flagst = "s_cmp_lg_u32 s16, 0\ns_cbranch_scc1 L_nofl\ns_mov_b64 exec, 1\nbuffer_store_byte v15, v13, s[8:11], 0 offen sc1\ns_mov_b64 exec, -1\nL_nofl:"
    tile(2, first=True, prebar="s_waitcnt vmcnt(0)", postbar=flagst)
    tile(2)
    A("s_nop 7")
    for b in range(4): A(cvt(b, 0, 0)); A(cvt(b, 1, 0))
    tile(2, first=True)
    tile(2, extra={(0, 0): "buffer_load_dwordx2 v[10:11], v14, s[8:11], 0 offen sc1"})
    A("s_nop 7")
    for b in range(4): A(cvt(b, 0, 1)); A(cvt(b, 1, 1))
    stamp()
    A("s_mov_b32 s35, 0x01010101\ns_mov_b32 s33, 0x40000\nL_poll1:\ns_waitcnt vmcnt(0)\nv_and_b32 v10, v10, v11\nv_and_b32 v10, s35, v10\nv_cmp_ne_u32 vcc, s35, v10\ns_cbranch_vccz L_poll1d\ns_sub_u32 s33, s33, 1\ns_cbranch_scc1 L_poll1d\ns_sleep 2\nbuffer_load_dwordx2 v[10:11], v14, s[8:11], 0 offen sc1\ns_branch L_poll1\nL_poll1d:")
    stamp()
    A("s_mov_b32 s29, 3\nL_p2:")
    for slot in range(2):
        tile(2, first=True, extra={(0, 1): pload(PF)})
        tile(2)
        A("s_waitcnt vmcnt(0)")
        pm(0, 0, slot); pm(0, 1, slot)
        for b in range(1, 4):
            A(cvt(b-1, 0, slot)); pm(b, 0, slot); A(cvt(b-1, 1, slot)); pm(b, 1, slot)
        A(cvt(3, 0, slot)); A(cvt(3, 1, slot))
    A("s_sub_u32 s29, s29, 1\ns_cmp_lg_u32 s29, 0\ns_cbranch_scc1 L_p2")
    stamp()
    A("s_waitcnt lgkmcnt(0)")
    A(pload(PF)); A(pload(WF))
    A("s_waitcnt vmcnt(2)")
    for b in range(4): pm(b, 0, 0); pm(b, 1, 0)
    A("s_waitcnt vmcnt(0)")
    for b in range(4): pm(b, 0, 1, WF); pm(b, 1, 1, WF)
    A(f"s_lshl_b32 s3, s17, 7\ns_lshl_b32 s4, s19, 3\ns_add_u32 s3, s3, s4\ns_add_u32 s3, s3, s20")
    A(f"v_and_b32 v14, 3, v0\nv_lshl_add_u32 v14, v14, 5, s3")
    A(f"s_lshl_b32 s3, s3, 16\ns_lshl_b32 s4, s16, 14\ns_add_u32 s3, s3, s4\ns_add_u32 s3, s3, {PART}")
    A("s_lshl_b32 s4, s18, 12\ns_add_u32 s5, s3, s4\ns_lshl_b32 s4, s18, 21\ns_add_u32 s6, s3, s4\ns_nop 7")
    for b in range(4):
        A(f"s_cmp_eq_u32 s18, {b}\ns_cbranch_scc1 L_own{b}")
        for i in range(4): A(f"buffer_store_dwordx4 v[{OUT+16*b+4*i}:{OUT+16*b+4*i+3}], v1, s[44:47], s5 offen offset:{1024*i} sc1")
        A(f"s_branch L_nxt{b}\nL_own{b}:")
        for r in range(16): A(f"v_mov_b32 v{ACC+r}, v{OUT+16*b+r}")
        A(f"L_nxt{b}:\ns_add_u32 s5, s5, {1<<21}")
    A("v_mov_b32 v15, 3\ns_mov_b32 s33, 0x40000\ns_waitcnt vmcnt(0)")
    stamp()
    A("s_barrier\ns_cmp_lg_u32 s16, 0\ns_cbranch_scc1 L_poll2\ns_mov_b64 exec, 1\nbuffer_store_byte v15, v13, s[8:11], 0 offen sc1\ns_mov_b64 exec, -1")
    A("L_poll2:\nbuffer_load_ubyte v10, v14, s[8:11], 0 offen sc1\ns_waitcnt vmcnt(0)\nv_cmp_ne_u32 vcc, 3, v10\ns_cbranch_vccz L_poll2d\ns_sub_u32 s33, s33, 1\ns_cbranch_scc1 L_poll2d\ns_sleep 1\ns_branch L_poll2\nL_poll2d:")
    stamp()
    for k in range(1, 4):
        A(f"s_add_u32 s4, s18, {k}\ns_and_b32 s4, s4, 3\ns_lshl_b32 s4, s4, 12\ns_add_u32 s4, s4, s6")
        for i in range(4): A(f"buffer_load_dwordx4 v[{ACC+16*k+4*i}:{ACC+16*k+4*i+3}], v1, s[44:47], s4 offen offset:{1024*i} sc1")
    A("v_and_b32 v11, 31, v0\nv_lshrrev_b32 v10, 5, v0\nv_lshlrev_b32 v10, 4, v10\nv_lshl_add_u32 v10, v11, 12, v10")
    A("s_lshl_b32 s3, s23, 17\ns_lshl_b32 s4, s17, 11\ns_add_u32 s3, s3, s4\ns_lshl_b32 s4, s20, 8\ns_add_u32 s3, s3, s4\ns_lshl_b32 s4, s18, 6\ns_add_u32 s3, s3, s4")
    for k in range(1, 4):
        A(f"s_waitcnt vmcnt({4*(3-k)})")
        for r in range(16): A(f"v_add_f32 v{ACC+r}, v{ACC+r}, v{ACC+16*k+r}")
    for i in range(8): A(f"v_cvt_pk_bf16_f32 v{WF+i}, v{ACC+2*i}, v{ACC+2*i+1}")
    A(f"buffer_store_dwordx4 v[{WF}:{WF+3}], v10, s[12:15], s3 offen\nbuffer_store_dwordx4 v[{WF+4}:{WF+7}], v10, s[12:15], s3 offen offset:32")
    if stamps: A("s_waitcnt vmcnt(0)")
    stamp()
    stamp_store(0)
    A("L_end:\ns_endpgm")
    o.append(f'''.section .rodata,"a"
.p2align 6
.amdhsa_kernel {NAME}_kernel
  .amdhsa_next_free_vgpr 256
  .amdhsa_next_free_sgpr 102
  .amdhsa_accum_offset 256
  .amdhsa_group_segment_fixed_size 0
  .amdhsa_kernarg_size 104
  .amdhsa_user_sgpr_count 2
  .amdhsa_user_sgpr_kernarg_segment_ptr 1
  .amdhsa_system_sgpr_workgroup_id_x 1
.end_amdhsa_kernel''')
    return "\n".join(o) + "\n"

if __name__ == "__main__":
    kw = {}
    out = sys.argv[1]
    for a in sys.argv[2:]:
        k, v = a.split("=")
        kw[k] = int(v) if v.lstrip("-").isdigit() else v
    open(out, "w").write(gen(**kw))
```

```python
import sys, math
NAME = "concat_heads__gqa_block_cached__mha_block_cached__near_ridge"
HDR = open("cdna_kernels/%s.s.ref" % NAME).read().split("; @launch")[0]

def gen(S=4, L=2, ntw="", ntx="", ntk="", ntv="", stamps=False, g1=4, g2=1, k0=4, kn=2, ks=4, vt=-1, psc="", noload=0, nocomp=0, tl=0, hack16=0):
    o = []
    role = [0]
    def A(s):
        for l in s.split("\n"):
            if noload and "offen" in l and l.strip().endswith("lds"): continue
            if nocomp & 1 and l.strip().startswith("v_mfma"): continue
            if nocomp & 2 and l.strip().startswith("ds_read"): continue
            if tl and role[0] == 1 and l.strip() == "s_barrier":
                o.append("    s_barrier\n    " + ("s_memtime" if tl == 2 else "s_memrealtime") + " s[94:95]\n    s_waitcnt lgkmcnt(0)\n    s_mov_b32 s92, m0\n    s_mov_b32 m0, s93\n    s_add_u32 s93, s93, 1\n    v_writelane_b32 v30, s94, m0\n    s_mov_b32 m0, s92"); continue
            o.append("    " + l.strip() if not l.strip().endswith(":") else l.strip())
    KBASE = S * 32768
    LDS = KBASE + 32768
    PART = 1 << 22
    STAMP = 1 << 26
    nst = [0]
    def stamp():
        if stamps:
            if nst[0] == 0: A("s_memtime s[96:97]")
            A(f"s_memrealtime s[{60+2*nst[0]}:{61+2*nst[0]}]\ns_memtime s[98:99]\ns_waitcnt lgkmcnt(0)")
            nst[0] += 1
    def stamp_store(role):
        if stamps:
            A(f"s_lshl_b32 s3, s2, 10\ns_lshl_b32 s4, s16, 7\ns_add_u32 s3, s3, s4\ns_add_u32 s3, s3, {STAMP}\nv_mov_b32 v1, 0")
            for i in range(nst[0]):
                A(f"v_mov_b32 v2, s{60+2*i}\nbuffer_store_dword v2, v1, s[44:47], s3 offen offset:{4*i}")
            A(f"s_sub_u32 s98, s98, s96\nv_mov_b32 v2, s98\nbuffer_store_dword v2, v1, s[44:47], s3 offen offset:120\nv_mov_b32 v2, {nst[0]}\nbuffer_store_dword v2, v1, s[44:47], s3 offen offset:124")
            A("s_waitcnt vmcnt(0)")
    o.append(HDR + f"; @launch grid=(256,1,1) block=(512,1,1) lds={LDS}")
    o.append(f'.amdgcn_target "amdgcn-amd-amdhsa--gfx950"\n.text\n.globl {NAME}_kernel\n.p2align 8\n.type {NAME}_kernel,@function\n{NAME}_kernel:')
    A("s_cmp_ge_u32 s2, 256\ns_cbranch_scc1 L_end")
    A("s_bfe_u32 s17, s2, 0x10002\ns_and_b32 s18, s2, 3\ns_lshr_b32 s19, s2, 6\ns_bfe_u32 s20, s2, 0x30003")
    A("s_mul_i32 s3, s17, 40\ns_add_u32 s4, s0, s3\ns_addc_u32 s5, s1, 0")
    A("s_load_dwordx8 s[24:31], s[4:5], 0\ns_load_dwordx2 s[32:33], s[4:5], 32\ns_load_dwordx4 s[36:39], s[0:1], 80\ns_load_dwordx2 s[44:45], s[0:1], 96")
    A("v_lshrrev_b32 v1, 6, v0\nv_and_b32 v0, 63, v0\nv_readfirstlane_b32 s16, v1")
    A("s_lshl_b32 s21, s17, 2\ns_add_u32 s21, s21, s19\ns_lshl_b32 s21, s21, 5")
    A("s_mov_b32 s46, 0x10000000\ns_mov_b32 s47, 0x20000")
    A("s_cmp_ge_u32 s16, 4\ns_cbranch_scc0 L_compute")
    role[0] = 1
    if tl: A("s_mov_b32 s93, 0")
    A("s_and_b32 s22, s16, 3")
    A("s_lshl_b32 s23, s19, 2\ns_add_u32 s23, s23, s22")
    A("s_lshl_b32 s34, s18, 3\ns_add_u32 s34, s34, s20")
    A("v_lshrrev_b32 v1, 3, v0\nv_lshrrev_b32 v2, 4, v0\nv_and_b32 v3, 7, v0\nv_xor_b32 v3, v3, v2\nv_lshlrev_b32 v3, 4, v3")
    A("v_xor_b32 v4, 64, v3")
    A("v_and_b32 v5, 15, v0\nv_lshlrev_b32 v6, 2, v2\nv_xor_b32 v6, v5, v6\nv_lshlrev_b32 v6, 4, v6")
    A("s_lshl_b32 s3, s23, 16")
    A("v_lshl_add_u32 v7, v1, 11, s3")
    for jj in range(4): A(f"v_add_u32 v{8+jj}, {jj*(16384-1024)}, v7\nv_add_u32 v{8+jj}, v{8+jj}, v{3+(jj&1)}")
    A("s_lshl_b32 s3, s22, 17\ns_lshl_b32 s4, s34, 8\ns_add_u32 s3, s3, s4\nv_lshl_add_u32 v7, v2, 13, s3\nv_add_u32 v7, v7, v6")
    for jj in range(4): A(f"v_add_u32 v{12+jj}, {jj*(32768-1024)}, v7")
    A("s_waitcnt lgkmcnt(0)")
    A("s_mov_b32 s4, s24\ns_and_b32 s5, s25, 0xffff\ns_mov_b32 s6, 0x100000\ns_mov_b32 s7, 0x20000")
    A("s_mov_b32 s8, s30\ns_and_b32 s9, s31, 0xffff\ns_mov_b32 s10, 0x800000\ns_mov_b32 s11, 0x20000")
    if g1 <= 4: A(f"s_add_u32 s40, s19, s20\ns_and_b32 s40, s40, {g1-1}")
    else: A(f"s_lshl_b32 s40, s19, 1\ns_add_u32 s40, s40, s20\ns_and_b32 s40, s40, 7\ns_lshl_b32 s40, s40, {1 if g1 == 16 else 0}")
    A("s_lshl_b32 s41, s22, 12")
    nops = [0]; need = {}
    def issue(t):
        if t < 16:
            A(f"s_xor_b32 s3, s40, {t}\ns_lshl_b32 s42, s3, 19\ns_lshl_b32 s43, s3, 7")
            w, x, wv, xv = "s[8:11]", "s[4:7]", 12, 8
        else:
            A(f"s_xor_b32 s3, s56, {t-16}\ns_lshl_b32 s42, s3, 17\ns_lshr_b32 s43, s3, 1\ns_mul_i32 s43, s43, s35\ns_and_b32 s3, s3, 1\ns_lshl_b32 s3, s3, 7\ns_add_u32 s43, s43, s3")
            w, x, wv, xv = "s[52:55]", "s[48:51]", 20, 16
        A(f"s_add_u32 m0, s41, {(t % S)*32768}\ns_add_u32 s3, s41, {(t % S)*32768+16384}")
        for jj in range(4): A(f"buffer_load_dwordx4 v{wv+jj}, {w}, s42 offen offset:{jj*1024} {ntw} lds")
        A("s_mov_b32 m0, s3\ns_nop 0")
        for jj in range(4): A(f"buffer_load_dwordx4 v{xv+jj}, {x}, s43 offen offset:{jj*1024} {ntx if t < 16 else ntv} lds")
        nops[0] += 8; need[t] = nops[0]
    stamp()
    for t in range(L): issue(t)
    A("s_cmp_eq_u32 s17, 0\ns_cselect_b32 s35, 0, 8192\ns_cselect_b32 s14, 19, 22\ns_cselect_b32 s58, 15, 18\ns_cselect_b32 s59, 13, 16")
    A("s_lshl_b32 s14, 1, s14\ns_mov_b32 s12, s26\ns_and_b32 s13, s27, 0xffff\ns_mov_b32 s15, 0x20000")
    A("s_mov_b32 s48, s28\ns_and_b32 s49, s29, 0xffff\ns_mov_b32 s50, s14\ns_mov_b32 s51, 0x20000")
    A("s_mov_b32 s52, s32\ns_and_b32 s53, s33, 0xffff\ns_mov_b32 s54, 0x800000\ns_mov_b32 s55, 0x20000")
    A("s_lshl_b32 s58, s23, s58\ns_lshl_b32 s59, s18, s59\ns_add_u32 s58, s58, s59")
    A("v_lshl_add_u32 v7, v1, 8, s58")
    for jj in range(4): A(f"v_add_u32 v{16+jj}, {jj*(2048-1024)}, v7\nv_add_u32 v{16+jj}, v{16+jj}, v{3+(jj&1)}")
    A("s_lshl_b32 s3, s18, 21\ns_lshl_b32 s59, s22, 15\ns_add_u32 s3, s3, s59\ns_lshl_b32 s59, s20, 8\ns_add_u32 s3, s3, s59\nv_lshl_add_u32 v7, v2, 11, s3\nv_add_u32 v7, v7, v6")
    for jj in range(4): A(f"v_add_u32 v{20+jj}, {jj*(8192-1024)}, v7")
    A("s_mul_i32 s59, s20, s35\ns_add_u32 s58, s58, s59\nv_lshl_add_u32 v7, v2, 8, s58\nv_xor_b32 v5, v5, v2\nv_lshlrev_b32 v5, 4, v5")
    for jj in range(4): A(f"v_xor_b32 v{24+jj}, {jj*64}, v5\nv_add_u32 v{24+jj}, v{24+jj}, v7")
    A("v_lshl_add_u32 v28, v0, 7, s58")
    A(f"s_lshl_b32 s56, s20, 1\ns_and_b32 s3, s19, {g2}\ns_add_u32 s56, s56, s3")
    A(f"s_lshl_b32 s57, s22, 13\ns_add_u32 s57, s57, {KBASE}\ns_movk_i32 s58, 4096")
    kat = {}
    for i in range(kn): kat[k0 + i*ks] = list(range(i*8//kn, (i+1)*8//kn))
    kneed = 0
    for t in range(32):
        n = need[t] if t != 16 else max(need[t], kneed)
        if t == 19:
            A("s_cmp_lg_u32 s22, 0\ns_cbranch_scc1 L_fok\ns_waitcnt lgkmcnt(0)")
            for i in range(0, 8, 4): A(f"s_and_b64 s[{80+i}:{81+i}], s[{80+i}:{81+i}], s[{82+i}:{83+i}]")
            A("s_and_b64 s[80:81], s[80:81], s[84:85]\ns_and_b32 s80, s80, s81\ns_cmp_lg_u32 s80, 0x01010101\ns_cbranch_scc1 L_fpoll\nL_fok:")
        A(f"s_waitcnt vmcnt({min(nops[0] - n, 63)})")
        if t in (0, 16): stamp()
        A("s_barrier")
        if t == 16: A("s_cmp_lg_u32 s22, 0\ns_cbranch_scc1 L_nfl\ns_load_dwordx8 s[80:87], s[38:39], s21 glc\nL_nfl:")
        u = t + L
        if u < 32: issue(u)
        if u in kat:
            for i in kat[u]:
                if i == kat[u][0] or i == 4: A(f"s_add_u32 m0, s57, {4096*(i>>2)}\ns_nop 0")
                A(f"buffer_load_dwordx4 v{24+(i&3)}, s[12:15], {'s58' if i >= 4 else '0'} offen offset:{(i&3)*1024} {ntk} lds")
            nops[0] += len(kat[u]); kneed = nops[0]
        if u == vt: A("buffer_load_dword v29, v28, s[48:51], 0 offen"); nops[0] += 1
    stamp()
    if stamps: A("s_and_b32 s45, s45, 0xffff")
    stamp_store(1)
    if tl: A(f"s_lshl_b32 s3, s2, 8\ns_add_u32 s3, s3, {STAMP + (1<<20)}\nv_lshlrev_b32 v1, 2, v0\nbuffer_store_dword v30, v1, s[44:47], s3 offen\ns_waitcnt vmcnt(0)")
    role[0] = 0
    A("s_endpgm")
    A("L_fpoll:\nv_and_b32 v1, 7, v0\nv_lshl_add_u32 v1, v1, 2, s21\ns_mov_b32 s33, 0x40000\ns_mov_b32 s80, 0x01010101\nL_fp1:\nglobal_load_dword v2, v1, s[38:39] sc1\ns_waitcnt vmcnt(0)")
    A("v_cmp_ne_u32 vcc, s80, v2\ns_cbranch_vccz L_fok\ns_sub_u32 s33, s33, 1\ns_cbranch_scc1 L_fok\ns_sleep 8\ns_branch L_fp1")
    nst[0] = 0
    A("L_compute:")
    ACC, OUT, HELD, WF, XF, PF = 64, 128, 192, 16, 48, 56
    A("v_lshrrev_b32 v10, 5, v0\nv_bfe_u32 v11, v0, 2, 2\nv_bfe_u32 v12, v0, 4, 1\nv_and_b32 v13, 1, v0\nv_bfe_u32 v14, v0, 1, 1")
    A("v_lshl_add_u32 v15, v10, 3, v11\nv_lshlrev_b32 v15, 8, v15\nv_lshl_add_u32 v15, v11, 6, v15\nv_lshl_add_u32 v15, v12, 5, v15\nv_lshl_add_u32 v15, v13, 4, v15\nv_lshl_add_u32 v2, v14, 3, v15")
    for b in range(1, 4): A(f"v_xor_b32 v{2+b}, {b*64}, v2")
    A("v_and_b32 v11, 31, v0\nv_bfe_u32 v12, v0, 1, 3\nv_xor_b32 v12, v12, v10\nv_lshlrev_b32 v12, 4, v12\nv_lshl_add_u32 v12, v11, 7, v12")
    A("s_lshl_b32 s3, s16, 12\ns_add_u32 s3, s3, 16384\nv_add_u32 v6, s3, v12")
    for s in range(1, 4): A(f"v_xor_b32 v{6+s}, {s*32}, v6")
    A("v_lshlrev_b32 v1, 4, v0")
    for r in range(64): A(f"v_mov_b32 v{ACC+r}, 0")
    A("s_lshl_b32 s23, s19, 2\ns_add_u32 s23, s23, s16")
    A("s_waitcnt lgkmcnt(0)")
    A("s_lshl_b32 s25, s18, 3\ns_add_u32 s25, s25, s21\ns_lshl_b32 s24, s25, 15\ns_lshl_b32 s3, s16, 13\ns_add_u32 s24, s24, s3\ns_add_u32 s25, s25, s20")
    A("s_lshl_b32 s34, s20, 15\ns_add_u32 s34, s34, s24\ns_mov_b32 s35, s34")
    A("v_mov_b32 v12, -1\nv_mov_b32 v13, -1\nv_mov_b32 v14, -1\nv_mov_b32 v15, -1\nv_mov_b32 v10, s25\nv_mov_b32 v11, 1")
    A("s_and_b32 s45, s45, 0xffff")
    A("s_mov_b32 s8, s38\ns_and_b32 s9, s39, 0xffff\ns_movk_i32 s10, 256\ns_mov_b32 s11, 0x20000")
    A("s_mov_b32 s12, s36\ns_and_b32 s13, s37, 0xffff\ns_mov_b32 s14, 0x200000\ns_mov_b32 s15, 0x20000")
    A("s_mov_b32 s26, 0")
    def rd_w(s, b, buf):
        A(f"ds_read_b64_tr_b16 v[{WF+16*buf+4*b}:{WF+16*buf+4*b+1}], v{2+b} offset:{s*4096}")
        A(f"ds_read_b64_tr_b16 v[{WF+16*buf+4*b+2}:{WF+16*buf+4*b+3}], v{2+b} offset:{s*4096+1024}")
    def rd_x(s, buf): A(f"ds_read_b128 v[{XF+4*buf}:{XF+4*buf+3}], v{6+s}")
    def mf(ph, b, buf, first):
        w = f"v[{WF+16*buf+4*b}:{WF+16*buf+4*b+3}]"; x = f"v[{XF+4*buf}:{XF+4*buf+3}]"; a = f"v[{ACC+16*b}:{ACC+16*b+15}]"
        c = "0" if first else a
        if hack16:
            for h in range(2):
                r0 = ACC+16*b+8*buf+4*h
                xx = f"v[{XF+4*(buf^h)}:{XF+4*(buf^h)+3}]"
                A(f"v_mfma_f32_16x16x32_bf16 v[{r0}:{r0+3}], {w}, {xx}, v[{r0}:{r0+3}]")
            return
        A(f"v_mfma_f32_32x32x16_bf16 {a}, {w}, {x}, {c}" if ph == 1 else f"v_mfma_f32_32x32x16_bf16 {a}, {x}, {w}, {c}")
    def tile(ph, first=False, extra=None, prebar=None, postbar=None):
        extra = extra or {}
        for s in range(3):
            buf = s & 1
            for b in range(4):
                A(f"s_waitcnt lgkmcnt({6 if b == 0 else 7})")
                mf(ph, b, buf, first and s == 0)
                if b == 0: rd_x(s+1, buf ^ 1)
                rd_w(s+1, b, buf ^ 1)
                if (s, b) in extra: A(extra[(s, b)])
                if s == 2 and b == 0: A(f"s_add_u32 s26, s26, 1\ns_cmp_eq_u32 s26, {S}\ns_cselect_b32 s26, 0, s26\ns_cselect_b32 s27, {-(S-1)*32768 & 0xffffffff}, s28")
        A("s_waitcnt lgkmcnt(6)"); mf(ph, 0, 1, False)
        for r in range(2, 6): A(f"v_add_u32 v{r}, s27, v{r}")
        A("s_waitcnt lgkmcnt(4)"); mf(ph, 1, 1, False)
        for r in range(6, 10): A(f"v_add_u32 v{r}, s27, v{r}")
        A("s_waitcnt lgkmcnt(0)")
        if prebar: A(prebar)
        A("s_barrier")
        rd_x(0, 0); rd_w(0, 0, 0)
        mf(ph, 2, 1, False)
        rd_w(0, 1, 0); rd_w(0, 2, 0)
        mf(ph, 3, 1, False)
        rd_w(0, 3, 0)
        if postbar: A(postbar)
    A("s_mov_b32 s28, 32768")
    stamp()
    A("s_barrier")
    stamp()
    rd_x(0, 0)
    for b in range(4): rd_w(0, b, 0)
    A("s_mov_b32 s29, 8\nL_p1:")
    tile(1, extra={(0, 1): "buffer_store_dwordx4 v[12:15], v1, s[44:47], s35 offen sc1\ns_add_u32 s35, s35, 1024"})
    A("s_sub_u32 s29, s29, 1\ns_cmp_lg_u32 s29, 0\ns_cbranch_scc1 L_p1")
    tile(1)
    flagst = "s_cmp_lg_u32 s16, 0\ns_cbranch_scc1 L_nofl\ns_mov_b64 exec, 1\nbuffer_store_byte v11, v10, s[8:11], 0 offen sc1\ns_mov_b64 exec, -1\nL_nofl:"
    tile(1, prebar="s_waitcnt vmcnt(0)", postbar=flagst)
    A("s_mov_b32 s29, 6\nL_p1b:")
    tile(1)
    A("s_sub_u32 s29, s29, 1\ns_cmp_lg_u32 s29, 0\ns_cbranch_scc1 L_p1b")
    stamp()
    KF, SA, PP = 128, 160, 176
    A(f"v_and_b32 v11, 31, v0\nv_and_b32 v12, 15, v0\nv_lshrrev_b32 v10, 5, v0\nv_xor_b32 v12, v12, v10\nv_lshlrev_b32 v12, 4, v12\nv_lshl_add_u32 v12, v11, 8, v12")
    A(f"s_lshl_b32 s3, s16, 13\ns_add_u32 s3, s3, {KBASE}\nv_add_u32 v12, s3, v12\ns_waitcnt lgkmcnt(0)")
    for ks in range(8): A(f"v_xor_b32 v13, {ks*32}, v12\nds_read_b128 v[{KF+4*ks}:{KF+4*ks+3}], v13")
    for i in range(32): A(f"v_cvt_pk_bf16_f32 v{HELD+i}, v{ACC+2*i}, v{ACC+2*i+1}")
    A("s_waitcnt lgkmcnt(0)\ns_nop 0")
    for ks in range(8):
        A(f"v_mfma_f32_32x32x16_bf16 v[{SA}:{SA+15}], v[{KF+4*ks}:{KF+4*ks+3}], v[{HELD+4*ks}:{HELD+4*ks+3}], " + ("0" if ks == 0 else f"v[{SA}:{SA+15}]"))
    import struct
    c = struct.unpack("<I", struct.pack("<f", math.log2(math.e) / math.sqrt(128.0)))[0]
    A(f"s_mov_b32 s30, {c:#x}\ns_mov_b32 s3, s34\ns_nop 0")
    for r in range(16): A(f"v_mov_b32 v{OUT+r}, 0")
    A(f"v_max3_f32 v10, v{SA}, v{SA+1}, v{SA+2}")
    for r in range(3, 15, 2): A(f"v_max3_f32 v10, v10, v{SA+r}, v{SA+r+1}")
    A(f"v_max_f32 v10, v10, v{SA+15}\nv_mov_b32 v11, v10\ns_nop 1\nv_permlane32_swap_b32 v10, v11\ns_nop 1\nv_max_f32 v10, v10, v11\nv_mul_f32 v10, s30, v10")
    for r in range(16): A(f"v_fma_f32 v{SA+r}, v{SA+r}, s30, -v10")
    for r in range(16): A(f"v_exp_f32 v{SA+r}, v{SA+r}")
    A(f"s_nop 0\nv_add_f32 v10, v{SA}, v{SA+1}\nv_add_f32 v11, v{SA+2}, v{SA+3}")
    for r in range(4, 16, 2): A(f"v_add_f32 v10, v10, v{SA+r}\nv_add_f32 v11, v11, v{SA+r+1}")
    A("v_add_f32 v10, v10, v11\nv_mov_b32 v11, v10\ns_nop 1\nv_permlane32_swap_b32 v10, v11\ns_nop 1\nv_add_f32 v10, v10, v11\nv_rcp_f32 v10, v10\ns_nop 0")
    for r in range(16): A(f"v_mul_f32 v{SA+r}, v{SA+r}, v10")
    for i in range(8): A(f"v_cvt_pk_bf16_f32 v{PF+i}, v{SA+2*i}, v{SA+2*i+1}")
    A(f"buffer_store_dwordx4 v[{PF}:{PF+3}], v1, s[44:47], s3 offen sc1\nbuffer_store_dwordx4 v[{PF+4}:{PF+7}], v1, s[44:47], s3 offen offset:1024 sc1")
    for r in range(16, 64): A(f"v_mov_b32 v{OUT+r}, 0")
    stamp()
    def cvt(b, half, slot): return "\n".join(f"v_cvt_pk_bf16_f32 v{HELD+32*slot+8*b+4*half+i}, v{ACC+16*b+8*half+2*i}, v{ACC+16*b+8*half+2*i+1}" for i in range(4))
    def pm(b, s, slot, pf=PF): A(f"v_mfma_f32_32x32x16_bf16 v[{OUT+16*b}:{OUT+16*b+15}], v[{HELD+32*slot+8*b+4*s}:{HELD+32*slot+8*b+4*s+3}], v[{pf+4*s}:{pf+4*s+3}], v[{OUT+16*b}:{OUT+16*b+15}]")
    def ld2(pf, so, fl, off=0): return f"buffer_load_dwordx4 v[{pf}:{pf+3}], v1, s[44:47], {so} offen offset:{off} {fl}\nbuffer_load_dwordx4 v[{pf+4}:{pf+7}], v1, s[44:47], {so} offen offset:{off+1024} {fl}"
    def pload(pf, so): return f"s_xor_b32 {so}, s31, s20\ns_lshl_b32 {so}, {so}, 15\ns_add_u32 {so}, {so}, s24\ns_add_u32 s31, s31, 1\n" + ld2(pf, so, psc)
    def mx(regs):
        r = [f"v_max3_u32 v10, v{regs[0]}, v{regs[1]}, v{regs[2]}"]
        for i in range(3, len(regs) - 1, 2): r.append(f"v_max3_u32 v10, v10, v{regs[i]}, v{regs[i+1]}")
        r.append(f"v_max_u32 v10, v10, v{regs[-1]}\nv_cmp_eq_u32 vcc, -1, v10")
        return "\n".join(r)
    retry = []
    def chk(name, lst):
        regs = [p+i for p, _, _ in lst for i in range(8)]
        retry.append(f"L_rt{name}:\ns_sub_u32 s33, s33, 1\ns_cbranch_scc1 L_ok{name}\n" + "\n".join(ld2(p, so, "sc1", off) for p, so, off in lst) + f"\ns_branch L_ck{name}")
        return f"L_ck{name}:\ns_waitcnt vmcnt(0)\n" + mx(regs) + f"\ns_cbranch_vccnz L_rt{name}\nL_ok{name}:"
    def cvtpm():
        A(cvt(0, 0, 0)); A(cvt(0, 1, 0))
        for b in range(3):
            pm(b, 0, 0); A(cvt(b+1, 0, 0)); pm(b, 1, 0); A(cvt(b+1, 1, 0))
        pm(3, 0, 0); A("s_nop 1"); pm(3, 1, 0)
    A("s_mov_b32 s31, 1\ns_mov_b32 s33, 0x40000")
    tile(2, first=True); tile(2); cvtpm()
    tile(2, first=True); tile(2)
    for b in range(4):
        if b == 2: A("s_nop 7")
        A(cvt(b, 0, 1)); A(cvt(b, 1, 1))
    stamp()
    P1 = HELD + 24
    tile(2, first=True, extra={(0, 1): pload(P1, "s4") + "\n" + pload(PF, "s5")})
    tile(2, extra={(2, 1): chk("a", [(P1, "s4", 0), (PF, "s5", 0)])})
    for b in range(4): pm(b, 0, 1, P1); pm(b, 1, 1, P1)
    cvtpm()
    stamp()
    A("s_mov_b32 s29, 5\nL_p2:")
    tile(2, first=True, extra={(0, 1): pload(PF, "s5")})
    tile(2, extra={(2, 1): chk("b", [(PF, "s5", 0)])})
    cvtpm()
    A("s_sub_u32 s29, s29, 1\ns_cmp_lg_u32 s29, 0\ns_cbranch_scc1 L_p2")
    stamp()
    A("s_lshl_b32 s4, s18, 18\ns_sub_u32 s5, s34, s4\ns_add_u32 s6, s34, 2048\ns_add_u32 s7, s34, 6144")
    for b in range(4):
        A(f"s_cmp_eq_u32 s18, {b}\ns_cbranch_scc1 L_own{b}")
        A(f"s_sub_u32 s3, s18, {b}\ns_and_b32 s3, s3, 3\ns_lshl_b32 s3, s3, 11\ns_add_u32 s3, s3, s5")
        for i in range(8): A(f"v_cvt_pk_bf16_f32 v{HELD+8*b+i}, v{OUT+16*b+2*i}, v{OUT+16*b+2*i+1}")
        for i in range(2): A(f"buffer_store_dwordx4 v[{HELD+8*b+4*i}:{HELD+8*b+4*i+3}], v1, s[44:47], s3 offen offset:{1024*i} sc1")
        A(f"s_branch L_nxt{b}\nL_own{b}:")
        for r in range(16): A(f"v_mov_b32 v{ACC+r}, v{OUT+16*b+r}")
        A(f"L_nxt{b}:\ns_add_u32 s5, s5, {1<<18}")
    IN = ACC + 16
    lst = [(IN, "s6", 0), (IN+8, "s6", 2048), (IN+16, "s7", 0)]
    for p, so, off in lst: A(ld2(p, so, "sc1", off))
    A("v_and_b32 v11, 31, v0\nv_lshrrev_b32 v12, 5, v0\nv_lshlrev_b32 v12, 4, v12\nv_lshl_add_u32 v12, v11, 12, v12\ns_mov_b32 s30, 0xffff0000")
    A("s_lshl_b32 s3, s23, 17\ns_lshl_b32 s4, s17, 11\ns_add_u32 s3, s3, s4\ns_lshl_b32 s4, s20, 8\ns_add_u32 s3, s3, s4\ns_lshl_b32 s4, s18, 6\ns_add_u32 s3, s3, s4")
    stamp()
    A(chk("c", lst))
    stamp()
    A("s_waitcnt lgkmcnt(0)")
    for i in range(24): A(f"v_lshlrev_b32 v{OUT+i}, 16, v{IN+i}\nv_and_b32 v{IN+i}, s30, v{IN+i}")
    for k in range(3):
        for i in range(8): A(f"v_add_f32 v{ACC+2*i}, v{ACC+2*i}, v{OUT+8*k+i}\nv_add_f32 v{ACC+2*i+1}, v{ACC+2*i+1}, v{IN+8*k+i}")
    for i in range(8): A(f"v_cvt_pk_bf16_f32 v{WF+i}, v{ACC+2*i}, v{ACC+2*i+1}")
    A(f"buffer_store_dwordx4 v[{WF}:{WF+3}], v12, s[12:15], s3 offen\nbuffer_store_dwordx4 v[{WF+4}:{WF+7}], v12, s[12:15], s3 offen offset:32")
    if stamps: A("s_waitcnt vmcnt(0)")
    stamp()
    stamp_store(0)
    A("L_end:\ns_endpgm")
    for r in retry: A(r)
    o.append(f'''.section .rodata,"a"
.p2align 6
.amdhsa_kernel {NAME}_kernel
  .amdhsa_next_free_vgpr 256
  .amdhsa_next_free_sgpr 102
  .amdhsa_accum_offset 256
  .amdhsa_group_segment_fixed_size 0
  .amdhsa_kernarg_size 104
  .amdhsa_user_sgpr_count 2
  .amdhsa_user_sgpr_kernarg_segment_ptr 1
  .amdhsa_system_sgpr_workgroup_id_x 1
.end_amdhsa_kernel''')
    return "\n".join(o) + "\n"

if __name__ == "__main__":
    kw = {}
    out = sys.argv[1]
    for a in sys.argv[2:]:
        k, v = a.split("=")
        kw[k] = int(v) if v.lstrip("-").isdigit() else v
    open(out, "w").write(gen(**kw))
```

```python
import sys, math
NAME = "concat_heads__gqa_block_cached__mha_block_cached__near_ridge"
HDR = open("cdna_kernels/%s.s.ref" % NAME).read().split("; @launch")[0]

def gen(S=4, L=2, ntw="", ntx="", ntk="", ntv="", stamps=False, g1=4, g2=1, k0=4, kn=2, ks=4, vt=-1, psc="", noload=0, nocomp=0, tl=0, hack16=0, osc="", probe=None, pwg=-1):
    o = []
    role = [0]
    def A(s):
        for l in s.split("\n"):
            if noload and "offen" in l and l.strip().endswith("lds"): continue
            if nocomp & 1 and l.strip().startswith("v_mfma"): continue
            if nocomp & 2 and l.strip().startswith("ds_read"): continue
            if tl and role[0] == 1 and l.strip() == "s_barrier":
                o.append("    s_barrier\n    " + ("s_memtime" if tl == 2 else "s_memrealtime") + " s[94:95]\n    s_waitcnt lgkmcnt(0)\n    s_mov_b32 s92, m0\n    s_mov_b32 m0, s93\n    s_add_u32 s93, s93, 1\n    v_writelane_b32 v30, s94, m0\n    s_mov_b32 m0, s92"); continue
            o.append("    " + l.strip() if not l.strip().endswith(":") else l.strip())
    KBASE = S * 32768
    LDS = KBASE + 32768
    PART = 1 << 22
    STAMP = 1 << 26
    nst = [0]
    def stamp():
        if probe is not None and role[0] == 0:
            if nst[0] == 0: A("s_memrealtime s[60:61]\ns_waitcnt lgkmcnt(0)\ns_mov_b32 s62, s60")
            elif nst[0] == probe: A("s_memrealtime s[62:63]\ns_waitcnt lgkmcnt(0)")
            nst[0] += 1
        if stamps:
            if nst[0] == 0: A("s_memtime s[96:97]")
            A(f"s_memrealtime s[{60+2*nst[0]}:{61+2*nst[0]}]\ns_memtime s[98:99]\ns_waitcnt lgkmcnt(0)")
            nst[0] += 1
    def stamp_store(role):
        if stamps:
            A(f"s_lshl_b32 s3, s2, 10\ns_lshl_b32 s4, s16, 7\ns_add_u32 s3, s3, s4\ns_add_u32 s3, s3, {STAMP}\nv_mov_b32 v1, 0")
            for i in range(nst[0]):
                A(f"v_mov_b32 v2, s{60+2*i}\nbuffer_store_dword v2, v1, s[44:47], s3 offen offset:{4*i}")
            A(f"s_sub_u32 s98, s98, s96\nv_mov_b32 v2, s98\nbuffer_store_dword v2, v1, s[44:47], s3 offen offset:120\nv_mov_b32 v2, {nst[0]}\nbuffer_store_dword v2, v1, s[44:47], s3 offen offset:124")
            A("v_mov_b32 v2, s90\nbuffer_store_dword v2, v1, s[44:47], s3 offen offset:116\ns_waitcnt vmcnt(0)")
    o.append(HDR + f"; @launch grid=(256,1,1) block=(512,1,1) lds={LDS}")
    o.append(f'.amdgcn_target "amdgcn-amd-amdhsa--gfx950"\n.text\n.globl {NAME}_kernel\n.p2align 8\n.type {NAME}_kernel,@function\n{NAME}_kernel:')
    if stamps or probe == -1: A("s_memrealtime s[90:91]")
    A("s_cmp_ge_u32 s2, 256\ns_cbranch_scc1 L_end")
    A("s_bfe_u32 s17, s2, 0x10002\ns_and_b32 s18, s2, 3\ns_lshr_b32 s19, s2, 6\ns_bfe_u32 s20, s2, 0x30003")
    A("s_mul_i32 s3, s17, 40\ns_add_u32 s4, s0, s3\ns_addc_u32 s5, s1, 0")
    A("s_load_dwordx8 s[24:31], s[4:5], 0\ns_load_dwordx2 s[32:33], s[4:5], 32\ns_load_dwordx4 s[36:39], s[0:1], 80\ns_load_dwordx2 s[44:45], s[0:1], 96")
    A("v_lshrrev_b32 v1, 6, v0\nv_and_b32 v0, 63, v0\nv_readfirstlane_b32 s16, v1")
    A("s_lshl_b32 s21, s17, 2\ns_add_u32 s21, s21, s19\ns_lshl_b32 s21, s21, 5")
    A("s_mov_b32 s46, 0x10000000\ns_mov_b32 s47, 0x20000")
    A("s_cmp_ge_u32 s16, 4\ns_cbranch_scc0 L_compute")
    role[0] = 1
    if tl: A("s_mov_b32 s93, 0")
    A("s_and_b32 s22, s16, 3")
    A("s_lshl_b32 s23, s19, 2\ns_add_u32 s23, s23, s22")
    A("s_lshl_b32 s34, s18, 3\ns_add_u32 s34, s34, s20")
    A("v_lshrrev_b32 v1, 3, v0\nv_lshrrev_b32 v2, 4, v0\nv_and_b32 v3, 7, v0\nv_xor_b32 v3, v3, v2\nv_lshlrev_b32 v3, 4, v3")
    A("v_xor_b32 v4, 64, v3")
    A("v_and_b32 v5, 15, v0\nv_lshlrev_b32 v6, 2, v2\nv_xor_b32 v6, v5, v6\nv_lshlrev_b32 v6, 4, v6")
    A("s_lshl_b32 s3, s23, 16")
    A("v_lshl_add_u32 v7, v1, 11, s3")
    for jj in range(4): A(f"v_add_u32 v{8+jj}, {jj*(16384-1024)}, v7\nv_add_u32 v{8+jj}, v{8+jj}, v{3+(jj&1)}")
    A("s_lshl_b32 s3, s22, 17\ns_lshl_b32 s4, s34, 8\ns_add_u32 s3, s3, s4\nv_lshl_add_u32 v7, v2, 13, s3\nv_add_u32 v7, v7, v6")
    for jj in range(4): A(f"v_add_u32 v{12+jj}, {jj*(32768-1024)}, v7")
    A("s_waitcnt lgkmcnt(0)")
    A("s_mov_b32 s4, s24\ns_and_b32 s5, s25, 0xffff\ns_mov_b32 s6, 0x100000\ns_mov_b32 s7, 0x20000")
    A("s_mov_b32 s8, s30\ns_and_b32 s9, s31, 0xffff\ns_mov_b32 s10, 0x800000\ns_mov_b32 s11, 0x20000")
    if g1 <= 4: A(f"s_add_u32 s40, s19, s20\ns_and_b32 s40, s40, {g1-1}")
    else: A(f"s_lshl_b32 s40, s19, 1\ns_add_u32 s40, s40, s20\ns_and_b32 s40, s40, 7\ns_lshl_b32 s40, s40, {1 if g1 == 16 else 0}")
    A("s_lshl_b32 s41, s22, 12")
    nops = [0]; need = {}
    def issue(t):
        if t < 16:
            A(f"s_xor_b32 s3, s40, {t}\ns_lshl_b32 s42, s3, 19\ns_lshl_b32 s43, s3, 7")
            w, x, wv, xv = "s[8:11]", "s[4:7]", 12, 8
        else:
            A(f"s_xor_b32 s3, s56, {t-16}\ns_lshl_b32 s42, s3, 17\ns_lshr_b32 s43, s3, 1\ns_mul_i32 s43, s43, s35\ns_and_b32 s3, s3, 1\ns_lshl_b32 s3, s3, 7\ns_add_u32 s43, s43, s3")
            w, x, wv, xv = "s[52:55]", "s[48:51]", 20, 16
        A(f"s_add_u32 m0, s41, {(t % S)*32768}\ns_add_u32 s3, s41, {(t % S)*32768+16384}")
        for jj in range(4): A(f"buffer_load_dwordx4 v{wv+jj}, {w}, s42 offen offset:{jj*1024} {ntw} lds")
        A("s_mov_b32 m0, s3\ns_nop 0")
        for jj in range(4): A(f"buffer_load_dwordx4 v{xv+jj}, {x}, s43 offen offset:{jj*1024} {ntx if t < 16 else ntv} lds")
        nops[0] += 8; need[t] = nops[0]
    stamp()
    for t in range(L): issue(t)
    A("s_cmp_eq_u32 s17, 0\ns_cselect_b32 s35, 0, 8192\ns_cselect_b32 s14, 19, 22\ns_cselect_b32 s58, 15, 18\ns_cselect_b32 s59, 13, 16")
    A("s_lshl_b32 s14, 1, s14\ns_mov_b32 s12, s26\ns_and_b32 s13, s27, 0xffff\ns_mov_b32 s15, 0x20000")
    A("s_mov_b32 s48, s28\ns_and_b32 s49, s29, 0xffff\ns_mov_b32 s50, s14\ns_mov_b32 s51, 0x20000")
    A("s_mov_b32 s52, s32\ns_and_b32 s53, s33, 0xffff\ns_mov_b32 s54, 0x800000\ns_mov_b32 s55, 0x20000")
    A("s_lshl_b32 s58, s23, s58\ns_lshl_b32 s59, s18, s59\ns_add_u32 s58, s58, s59")
    A("v_lshl_add_u32 v7, v1, 8, s58")
    for jj in range(4): A(f"v_add_u32 v{16+jj}, {jj*(2048-1024)}, v7\nv_add_u32 v{16+jj}, v{16+jj}, v{3+(jj&1)}")
    A("s_lshl_b32 s3, s18, 21\ns_lshl_b32 s59, s22, 15\ns_add_u32 s3, s3, s59\ns_lshl_b32 s59, s20, 8\ns_add_u32 s3, s3, s59\nv_lshl_add_u32 v7, v2, 11, s3\nv_add_u32 v7, v7, v6")
    for jj in range(4): A(f"v_add_u32 v{20+jj}, {jj*(8192-1024)}, v7")
    A("s_mul_i32 s59, s20, s35\ns_add_u32 s58, s58, s59\nv_lshl_add_u32 v7, v2, 8, s58\nv_xor_b32 v5, v5, v2\nv_lshlrev_b32 v5, 4, v5")
    for jj in range(4): A(f"v_xor_b32 v{24+jj}, {jj*64}, v5\nv_add_u32 v{24+jj}, v{24+jj}, v7")
    A("v_lshl_add_u32 v28, v0, 7, s58")
    A(f"s_lshl_b32 s56, s20, 1\ns_and_b32 s3, s19, {g2}\ns_add_u32 s56, s56, s3")
    A(f"s_lshl_b32 s57, s22, 13\ns_add_u32 s57, s57, {KBASE}\ns_movk_i32 s58, 4096")
    kat = {}
    for i in range(kn): kat[k0 + i*ks] = list(range(i*8//kn, (i+1)*8//kn))
    kneed = 0
    for t in range(32):
        n = need[t] if t != 16 else max(need[t], kneed)
        if t == 19:
            A("s_cmp_lg_u32 s22, 0\ns_cbranch_scc1 L_fok\ns_waitcnt lgkmcnt(0)")
            for i in range(0, 8, 4): A(f"s_and_b64 s[{80+i}:{81+i}], s[{80+i}:{81+i}], s[{82+i}:{83+i}]")
            A("s_and_b64 s[80:81], s[80:81], s[84:85]\ns_and_b32 s80, s80, s81\ns_cmp_lg_u32 s80, 0x01010101\ns_cbranch_scc1 L_fpoll\nL_fok:")
        A(f"s_waitcnt vmcnt({min(nops[0] - n, 63)})")
        if t in (0, 16): stamp()
        A("s_barrier")
        if t == 16: A("s_cmp_lg_u32 s22, 0\ns_cbranch_scc1 L_nfl\ns_load_dwordx8 s[80:87], s[38:39], s21 glc\nL_nfl:")
        u = t + L
        if u < 32: issue(u)
        if u in kat:
            for i in kat[u]:
                if i == kat[u][0] or i == 4: A(f"s_add_u32 m0, s57, {4096*(i>>2)}\ns_nop 0")
                A(f"buffer_load_dwordx4 v{24+(i&3)}, s[12:15], {'s58' if i >= 4 else '0'} offen offset:{(i&3)*1024} {ntk} lds")
            nops[0] += len(kat[u]); kneed = nops[0]
        if u == vt: A("buffer_load_dword v29, v28, s[48:51], 0 offen"); nops[0] += 1
    stamp()
    if stamps: A("s_and_b32 s45, s45, 0xffff")
    stamp_store(1)
    if tl: A(f"s_lshl_b32 s3, s2, 8\ns_add_u32 s3, s3, {STAMP + (1<<20)}\nv_lshlrev_b32 v1, 2, v0\nbuffer_store_dword v30, v1, s[44:47], s3 offen\ns_waitcnt vmcnt(0)")
    role[0] = 0
    A("s_endpgm")
    A("L_fpoll:\nv_and_b32 v1, 7, v0\nv_lshl_add_u32 v1, v1, 2, s21\ns_mov_b32 s33, 0x40000\ns_mov_b32 s80, 0x01010101\nL_fp1:\nglobal_load_dword v2, v1, s[38:39] sc1\ns_waitcnt vmcnt(0)")
    A("v_cmp_ne_u32 vcc, s80, v2\ns_cbranch_vccz L_fok\ns_sub_u32 s33, s33, 1\ns_cbranch_scc1 L_fok\ns_sleep 8\ns_branch L_fp1")
    nst[0] = 0
    A("L_compute:")
    ACC, OUT, HELD, WF, XF, PF = 64, 128, 192, 16, 48, 56
    A("v_lshrrev_b32 v10, 5, v0\nv_bfe_u32 v11, v0, 2, 2\nv_bfe_u32 v12, v0, 4, 1\nv_and_b32 v13, 1, v0\nv_bfe_u32 v14, v0, 1, 1")
    A("v_lshl_add_u32 v15, v10, 3, v11\nv_lshlrev_b32 v15, 8, v15\nv_lshl_add_u32 v15, v11, 6, v15\nv_lshl_add_u32 v15, v12, 5, v15\nv_lshl_add_u32 v15, v13, 4, v15\nv_lshl_add_u32 v2, v14, 3, v15")
    for b in range(1, 4): A(f"v_xor_b32 v{2+b}, {b*64}, v2")
    A("v_and_b32 v11, 31, v0\nv_bfe_u32 v12, v0, 1, 3\nv_xor_b32 v12, v12, v10\nv_lshlrev_b32 v12, 4, v12\nv_lshl_add_u32 v12, v11, 7, v12")
    A("s_lshl_b32 s3, s16, 12\ns_add_u32 s3, s3, 16384\nv_add_u32 v6, s3, v12")
    for s in range(1, 4): A(f"v_xor_b32 v{6+s}, {s*32}, v6")
    A("v_lshlrev_b32 v1, 4, v0")
    for r in range(64): A(f"v_mov_b32 v{ACC+r}, 0")
    A("s_lshl_b32 s23, s19, 2\ns_add_u32 s23, s23, s16")
    A("s_waitcnt lgkmcnt(0)")
    A("s_lshl_b32 s25, s18, 3\ns_add_u32 s25, s25, s21\ns_lshl_b32 s24, s25, 15\ns_lshl_b32 s3, s16, 13\ns_add_u32 s24, s24, s3\ns_add_u32 s25, s25, s20")
    A("s_lshl_b32 s34, s20, 15\ns_add_u32 s34, s34, s24\ns_mov_b32 s35, s34")
    A("v_mov_b32 v12, -1\nv_mov_b32 v13, -1\nv_mov_b32 v14, -1\nv_mov_b32 v15, -1\nv_mov_b32 v10, s25\nv_mov_b32 v11, 1")
    A("s_and_b32 s45, s45, 0xffff")
    A("s_mov_b32 s8, s38\ns_and_b32 s9, s39, 0xffff\ns_movk_i32 s10, 256\ns_mov_b32 s11, 0x20000")
    A("s_mov_b32 s12, s36\ns_and_b32 s13, s37, 0xffff\ns_mov_b32 s14, 0x200000\ns_mov_b32 s15, 0x20000")
    A("s_mov_b32 s26, 0")
    def rd_w(s, b, buf):
        A(f"ds_read_b64_tr_b16 v[{WF+16*buf+4*b}:{WF+16*buf+4*b+1}], v{2+b} offset:{s*4096}")
        A(f"ds_read_b64_tr_b16 v[{WF+16*buf+4*b+2}:{WF+16*buf+4*b+3}], v{2+b} offset:{s*4096+1024}")
    def rd_x(s, buf): A(f"ds_read_b128 v[{XF+4*buf}:{XF+4*buf+3}], v{6+s}")
    def mf(ph, b, buf, first):
        w = f"v[{WF+16*buf+4*b}:{WF+16*buf+4*b+3}]"; x = f"v[{XF+4*buf}:{XF+4*buf+3}]"; a = f"v[{ACC+16*b}:{ACC+16*b+15}]"
        c = "0" if first else a
        if hack16:
            for h in range(2):
                r0 = ACC+16*b+8*buf+4*h
                xx = f"v[{XF+4*(buf^h)}:{XF+4*(buf^h)+3}]"
                A(f"v_mfma_f32_16x16x32_bf16 v[{r0}:{r0+3}], {w}, {xx}, v[{r0}:{r0+3}]")
            return
        A(f"v_mfma_f32_32x32x16_bf16 {a}, {w}, {x}, {c}" if ph == 1 else f"v_mfma_f32_32x32x16_bf16 {a}, {x}, {w}, {c}")
    def tile(ph, first=False, extra=None, prebar=None, postbar=None):
        extra = extra or {}
        for s in range(3):
            buf = s & 1
            for b in range(4):
                A(f"s_waitcnt lgkmcnt({6 if b == 0 else 7})")
                mf(ph, b, buf, first and s == 0)
                if b == 0: rd_x(s+1, buf ^ 1)
                rd_w(s+1, b, buf ^ 1)
                if (s, b) in extra: A(extra[(s, b)])
                if s == 2 and b == 0: A(f"s_add_u32 s26, s26, 1\ns_cmp_eq_u32 s26, {S}\ns_cselect_b32 s26, 0, s26\ns_cselect_b32 s27, {-(S-1)*32768 & 0xffffffff}, s28")
        A("s_waitcnt lgkmcnt(6)"); mf(ph, 0, 1, False)
        for r in range(2, 6): A(f"v_add_u32 v{r}, s27, v{r}")
        A("s_waitcnt lgkmcnt(4)"); mf(ph, 1, 1, False)
        for r in range(6, 10): A(f"v_add_u32 v{r}, s27, v{r}")
        A("s_waitcnt lgkmcnt(0)")
        if prebar: A(prebar)
        A("s_barrier")
        rd_x(0, 0); rd_w(0, 0, 0)
        mf(ph, 2, 1, False)
        rd_w(0, 1, 0); rd_w(0, 2, 0)
        mf(ph, 3, 1, False)
        rd_w(0, 3, 0)
        if postbar: A(postbar)
    A("s_mov_b32 s28, 32768")
    stamp()
    A("s_barrier")
    stamp()
    rd_x(0, 0)
    for b in range(4): rd_w(0, b, 0)
    A("s_mov_b32 s29, 8\nL_p1:")
    tile(1, extra={(0, 1): "buffer_store_dwordx4 v[12:15], v1, s[44:47], s35 offen sc1\ns_add_u32 s35, s35, 1024"})
    A("s_sub_u32 s29, s29, 1\ns_cmp_lg_u32 s29, 0\ns_cbranch_scc1 L_p1")
    tile(1)
    flagst = "s_cmp_lg_u32 s16, 0\ns_cbranch_scc1 L_nofl\ns_mov_b64 exec, 1\nbuffer_store_byte v11, v10, s[8:11], 0 offen sc1\ns_mov_b64 exec, -1\nL_nofl:"
    tile(1, prebar="s_waitcnt vmcnt(0)", postbar=flagst)
    A("s_mov_b32 s29, 6\nL_p1b:")
    tile(1)
    A("s_sub_u32 s29, s29, 1\ns_cmp_lg_u32 s29, 0\ns_cbranch_scc1 L_p1b")
    stamp()
    KF, SA, PP = 128, 160, 176
    A(f"v_and_b32 v11, 31, v0\nv_and_b32 v12, 15, v0\nv_lshrrev_b32 v10, 5, v0\nv_xor_b32 v12, v12, v10\nv_lshlrev_b32 v12, 4, v12\nv_lshl_add_u32 v12, v11, 8, v12")
    A(f"s_lshl_b32 s3, s16, 13\ns_add_u32 s3, s3, {KBASE}\nv_add_u32 v12, s3, v12\ns_waitcnt lgkmcnt(0)")
    for ks in range(8): A(f"v_xor_b32 v13, {ks*32}, v12\nds_read_b128 v[{KF+4*ks}:{KF+4*ks+3}], v13")
    for i in range(32): A(f"v_cvt_pk_bf16_f32 v{HELD+i}, v{ACC+2*i}, v{ACC+2*i+1}")
    A("s_waitcnt lgkmcnt(0)\ns_nop 0")
    for ks in range(8):
        A(f"v_mfma_f32_32x32x16_bf16 v[{SA}:{SA+15}], v[{KF+4*ks}:{KF+4*ks+3}], v[{HELD+4*ks}:{HELD+4*ks+3}], " + ("0" if ks == 0 else f"v[{SA}:{SA+15}]"))
    import struct
    c = struct.unpack("<I", struct.pack("<f", math.log2(math.e) / math.sqrt(128.0)))[0]
    A(f"s_mov_b32 s30, {c:#x}\ns_mov_b32 s3, s34\ns_nop 0")
    for r in range(16): A(f"v_mov_b32 v{OUT+r}, 0")
    A(f"v_max3_f32 v10, v{SA}, v{SA+1}, v{SA+2}")
    for r in range(3, 15, 2): A(f"v_max3_f32 v10, v10, v{SA+r}, v{SA+r+1}")
    A(f"v_max_f32 v10, v10, v{SA+15}\nv_mov_b32 v11, v10\ns_nop 1\nv_permlane32_swap_b32 v10, v11\ns_nop 1\nv_max_f32 v10, v10, v11\nv_mul_f32 v10, s30, v10")
    for r in range(16): A(f"v_fma_f32 v{SA+r}, v{SA+r}, s30, -v10")
    for r in range(16): A(f"v_exp_f32 v{SA+r}, v{SA+r}")
    A(f"s_nop 0\nv_add_f32 v10, v{SA}, v{SA+1}\nv_add_f32 v11, v{SA+2}, v{SA+3}")
    for r in range(4, 16, 2): A(f"v_add_f32 v10, v10, v{SA+r}\nv_add_f32 v11, v11, v{SA+r+1}")
    A("v_add_f32 v10, v10, v11\nv_mov_b32 v11, v10\ns_nop 1\nv_permlane32_swap_b32 v10, v11\ns_nop 1\nv_add_f32 v10, v10, v11\nv_rcp_f32 v10, v10\ns_nop 0")
    for r in range(16): A(f"v_mul_f32 v{SA+r}, v{SA+r}, v10")
    for i in range(8): A(f"v_cvt_pk_bf16_f32 v{PF+i}, v{SA+2*i}, v{SA+2*i+1}")
    A(f"buffer_store_dwordx4 v[{PF}:{PF+3}], v1, s[44:47], s3 offen sc1\nbuffer_store_dwordx4 v[{PF+4}:{PF+7}], v1, s[44:47], s3 offen offset:1024 sc1")
    for r in range(16, 64): A(f"v_mov_b32 v{OUT+r}, 0")
    stamp()
    def cvt(b, half, slot): return "\n".join(f"v_cvt_pk_bf16_f32 v{HELD+32*slot+8*b+4*half+i}, v{ACC+16*b+8*half+2*i}, v{ACC+16*b+8*half+2*i+1}" for i in range(4))
    def pm(b, s, slot, pf=PF): A(f"v_mfma_f32_32x32x16_bf16 v[{OUT+16*b}:{OUT+16*b+15}], v[{HELD+32*slot+8*b+4*s}:{HELD+32*slot+8*b+4*s+3}], v[{pf+4*s}:{pf+4*s+3}], v[{OUT+16*b}:{OUT+16*b+15}]")
    def ld2(pf, so, fl, off=0): return f"buffer_load_dwordx4 v[{pf}:{pf+3}], v1, s[44:47], {so} offen offset:{off} {fl}\nbuffer_load_dwordx4 v[{pf+4}:{pf+7}], v1, s[44:47], {so} offen offset:{off+1024} {fl}"
    def pload(pf, so): return f"s_xor_b32 {so}, s31, s20\ns_lshl_b32 {so}, {so}, 15\ns_add_u32 {so}, {so}, s24\ns_add_u32 s31, s31, 1\n" + ld2(pf, so, psc)
    def mx(regs):
        r = [f"v_max3_u32 v10, v{regs[0]}, v{regs[1]}, v{regs[2]}"]
        for i in range(3, len(regs) - 1, 2): r.append(f"v_max3_u32 v10, v10, v{regs[i]}, v{regs[i+1]}")
        r.append(f"v_max_u32 v10, v10, v{regs[-1]}\nv_cmp_eq_u32 vcc, -1, v10")
        return "\n".join(r)
    retry = []
    def chk(name, lst):
        regs = [p+i for p, _, _ in lst for i in range(8)]
        retry.append(f"L_rt{name}:\ns_sub_u32 s33, s33, 1\ns_cbranch_scc1 L_ok{name}\n" + "\n".join(ld2(p, so, "sc1", off) for p, so, off in lst) + f"\ns_branch L_ck{name}")
        return f"L_ck{name}:\ns_waitcnt vmcnt(0)\n" + mx(regs) + f"\ns_cbranch_vccnz L_rt{name}\nL_ok{name}:"
    def cvtpm():
        A(cvt(0, 0, 0)); A(cvt(0, 1, 0))
        for b in range(3):
            pm(b, 0, 0); A(cvt(b+1, 0, 0)); pm(b, 1, 0); A(cvt(b+1, 1, 0))
        pm(3, 0, 0); A("s_nop 1"); pm(3, 1, 0)
    A("s_mov_b32 s31, 1\ns_mov_b32 s33, 0x40000")
    tile(2, first=True); tile(2); cvtpm()
    tile(2, first=True); tile(2)
    for b in range(4):
        if b == 2: A("s_nop 7")
        A(cvt(b, 0, 1)); A(cvt(b, 1, 1))
    stamp()
    P1 = HELD + 24
    tile(2, first=True, extra={(0, 1): pload(P1, "s4") + "\n" + pload(PF, "s5")})
    tile(2, extra={(2, 1): chk("a", [(P1, "s4", 0), (PF, "s5", 0)])})
    for b in range(4): pm(b, 0, 1, P1); pm(b, 1, 1, P1)
    cvtpm()
    stamp()
    A("s_mov_b32 s29, 5\nL_p2:")
    tile(2, first=True, extra={(0, 1): pload(PF, "s5")})
    tile(2, extra={(2, 1): chk("b", [(PF, "s5", 0)])})
    cvtpm()
    A("s_sub_u32 s29, s29, 1\ns_cmp_lg_u32 s29, 0\ns_cbranch_scc1 L_p2")
    stamp()
    A("s_lshl_b32 s4, s18, 18\ns_sub_u32 s5, s34, s4\ns_add_u32 s6, s34, 2048\ns_add_u32 s7, s34, 6144")
    for b in range(4):
        A(f"s_cmp_eq_u32 s18, {b}\ns_cbranch_scc1 L_own{b}")
        A(f"s_sub_u32 s3, s18, {b}\ns_and_b32 s3, s3, 3\ns_lshl_b32 s3, s3, 11\ns_add_u32 s3, s3, s5")
        for i in range(8): A(f"v_cvt_pk_bf16_f32 v{HELD+8*b+i}, v{OUT+16*b+2*i}, v{OUT+16*b+2*i+1}")
        for i in range(2): A(f"buffer_store_dwordx4 v[{HELD+8*b+4*i}:{HELD+8*b+4*i+3}], v1, s[44:47], s3 offen offset:{1024*i} sc1")
        A(f"s_branch L_nxt{b}\nL_own{b}:")
        for r in range(16): A(f"v_mov_b32 v{ACC+r}, v{OUT+16*b+r}")
        A(f"L_nxt{b}:\ns_add_u32 s5, s5, {1<<18}")
    IN = ACC + 16
    lst = [(IN, "s6", 0), (IN+8, "s6", 2048), (IN+16, "s7", 0)]
    for p, so, off in lst: A(ld2(p, so, "sc1", off))
    A("v_and_b32 v11, 31, v0\nv_lshrrev_b32 v12, 5, v0\nv_lshlrev_b32 v12, 4, v12\nv_lshl_add_u32 v12, v11, 12, v12\ns_mov_b32 s30, 0xffff0000")
    A("s_lshl_b32 s3, s23, 17\ns_lshl_b32 s4, s17, 11\ns_add_u32 s3, s3, s4\ns_lshl_b32 s4, s20, 8\ns_add_u32 s3, s3, s4\ns_lshl_b32 s4, s18, 6\ns_add_u32 s3, s3, s4")
    stamp()
    A(chk("c", lst))
    stamp()
    A("s_waitcnt lgkmcnt(0)")
    for i in range(24): A(f"v_lshlrev_b32 v{OUT+i}, 16, v{IN+i}\nv_and_b32 v{IN+i}, s30, v{IN+i}")
    for k in range(3):
        for i in range(8): A(f"v_add_f32 v{ACC+2*i}, v{ACC+2*i}, v{OUT+8*k+i}\nv_add_f32 v{ACC+2*i+1}, v{ACC+2*i+1}, v{IN+8*k+i}")
    for i in range(8): A(f"v_cvt_pk_bf16_f32 v{WF+i}, v{ACC+2*i}, v{ACC+2*i+1}")
    A(f"buffer_store_dwordx4 v[{WF}:{WF+3}], v12, s[12:15], s3 offen {osc}\nbuffer_store_dwordx4 v[{WF+4}:{WF+7}], v12, s[12:15], s3 offen offset:32 {osc}")
    if stamps or probe is not None: A("s_waitcnt vmcnt(0)")
    stamp()
    stamp_store(0)
    if probe is not None:
        if pwg >= 0: A(f"s_cmp_lg_u32 s2, {pwg}\ns_cbranch_scc1 L_end")
        if probe == -1: A("s_mov_b32 s62, s90")
        A("s_add_u32 s62, s62, 5000\nL_spin:\ns_sleep 4\ns_memrealtime s[64:65]\ns_waitcnt lgkmcnt(0)\ns_sub_u32 s64, s64, s62\ns_cmp_lt_i32 s64, 0\ns_cbranch_scc1 L_spin")
    A("L_end:\ns_endpgm")
    for r in retry: A(r)
    o.append(f'''.section .rodata,"a"
.p2align 6
.amdhsa_kernel {NAME}_kernel
  .amdhsa_next_free_vgpr 256
  .amdhsa_next_free_sgpr 102
  .amdhsa_accum_offset 256
  .amdhsa_group_segment_fixed_size 0
  .amdhsa_kernarg_size 104
  .amdhsa_user_sgpr_count 2
  .amdhsa_user_sgpr_kernarg_segment_ptr 1
  .amdhsa_system_sgpr_workgroup_id_x 1
.end_amdhsa_kernel''')
    return "\n".join(o) + "\n"

if __name__ == "__main__":
    kw = {}
    out = sys.argv[1]
    for a in sys.argv[2:]:
        k, v = a.split("=")
        kw[k] = int(v) if v.lstrip("-").isdigit() else v.replace('+', ' ')
    open(out, "w").write(gen(**kw))
```

```python
import sys, math
NAME = "concat_heads__gqa_block_cached__mha_block_cached__near_ridge"
HDR = open("cdna_kernels/%s.s.ref" % NAME).read().split("; @launch")[0]

def gen(D=2, tok=6, sl=1, prl=0, prc=0, ntw="", ntx="", ntk="", ntv="", stamps=False, g1=4, g2=1, fi=0, ki=-1, vi=-1, fsc="sc1", psc="", noload=0, nocomp=0, tl=0, hack16=0, osc="", probe=None, pwg=-1):
    o = []
    role = [0]
    def A(s):
        for l in s.split("\n"):
            if noload and "offen" in l and l.strip().endswith("lds"): continue
            if nocomp & 1 and l.strip().startswith("v_mfma"): continue
            if nocomp & 2 and l.strip().startswith("ds_read") and "ds_read_b32" not in l: continue
            o.append("    " + l.strip() if not l.strip().endswith(":") else l.strip())
    S = 4; RB = 2048
    LDS = RB + S * 32768
    STAMP = 1 << 26
    nst = [0]
    def stamp():
        if probe is not None and role[0] == 0:
            if nst[0] == 0: A("s_memrealtime s[60:61]\ns_waitcnt lgkmcnt(0)\ns_mov_b32 s62, s60")
            elif nst[0] == probe: A("s_memrealtime s[62:63]\ns_waitcnt lgkmcnt(0)")
            nst[0] += 1
        if stamps:
            if nst[0] == 0: A("s_memtime s[96:97]")
            A(f"s_memrealtime s[{60+2*nst[0]}:{61+2*nst[0]}]\ns_memtime s[98:99]\ns_waitcnt lgkmcnt(0)")
            nst[0] += 1
    def stamp_store(role):
        if stamps:
            A(f"s_lshl_b32 s3, s2, 10\ns_lshl_b32 s4, s16, 7\ns_add_u32 s3, s3, s4\ns_add_u32 s3, s3, {STAMP}\nv_mov_b32 v1, 0")
            for i in range(nst[0]):
                A(f"v_mov_b32 v2, s{60+2*i}\nbuffer_store_dword v2, v1, s[44:47], s3 offen offset:{4*i}")
            A(f"s_sub_u32 s98, s98, s96\nv_mov_b32 v2, s98\nbuffer_store_dword v2, v1, s[44:47], s3 offen offset:120\nv_mov_b32 v2, {nst[0]}\nbuffer_store_dword v2, v1, s[44:47], s3 offen offset:124")
            A("v_mov_b32 v2, s90\nbuffer_store_dword v2, v1, s[44:47], s3 offen offset:116\ns_waitcnt vmcnt(0)")
    o.append(HDR + f"; @launch grid=(256,1,1) block=(512,1,1) lds={LDS}")
    o.append(f'.amdgcn_target "amdgcn-amd-amdhsa--gfx950"\n.text\n.globl {NAME}_kernel\n.p2align 8\n.type {NAME}_kernel,@function\n{NAME}_kernel:')
    if stamps or probe == -1: A("s_memrealtime s[90:91]")
    A("s_cmp_ge_u32 s2, 256\ns_cbranch_scc1 L_end")
    A("s_bfe_u32 s17, s2, 0x10002\ns_and_b32 s18, s2, 3\ns_lshr_b32 s19, s2, 6\ns_bfe_u32 s20, s2, 0x30003")
    A("s_mul_i32 s3, s17, 40\ns_add_u32 s4, s0, s3\ns_addc_u32 s5, s1, 0")
    A("s_load_dwordx8 s[24:31], s[4:5], 0\ns_load_dwordx2 s[32:33], s[4:5], 32\ns_load_dwordx4 s[36:39], s[0:1], 80\ns_load_dwordx2 s[44:45], s[0:1], 96")
    A("v_lshrrev_b32 v1, 6, v0\nv_and_b32 v0, 63, v0\nv_readfirstlane_b32 s16, v1")
    A("s_lshl_b32 s21, s17, 2\ns_add_u32 s21, s21, s19\ns_lshl_b32 s21, s21, 5")
    A("s_mov_b32 s92, 0x1000000\ns_mov_b32 s46, 0x10000000\ns_mov_b32 s47, 0x20000")
    A("v_lshlrev_b32 v13, 2, v0\nv_mov_b32 v12, 0\ns_cmp_ge_u32 s16, 4\ns_cbranch_scc0 L_compute")
    role[0] = 1
    if prl: A(f"s_setprio {prl}")
    A("s_and_b32 s22, s16, 3")
    A("v_cmp_eq_u32 vcc, 4, v0\nv_cndmask_b32 v12, v12, -3, vcc\nds_write_b32 v13, v12")
    A("s_lshl_b32 s23, s19, 2")
    A("s_lshl_b32 s34, s18, 3\ns_add_u32 s34, s34, s20")
    A("v_lshrrev_b32 v1, 3, v0\nv_lshrrev_b32 v2, 4, v0\nv_and_b32 v3, 7, v0\nv_xor_b32 v3, v3, v2\nv_lshlrev_b32 v3, 4, v3")
    A("v_xor_b32 v4, 64, v3")
    A("v_and_b32 v5, 15, v0\nv_lshlrev_b32 v6, 2, v2\nv_xor_b32 v6, v5, v6\nv_lshlrev_b32 v6, 4, v6")
    A("s_lshl_b32 s3, s23, 16")
    A("v_lshl_add_u32 v7, v1, 11, s3")
    for jj in range(4): A(f"v_add_u32 v{8+jj}, {jj*(16384-1024)}, v7\nv_add_u32 v{8+jj}, v{8+jj}, v{3+(jj&1)}")
    A("s_lshl_b32 s3, s34, 8\nv_lshl_add_u32 v7, v2, 13, s3\nv_add_u32 v7, v7, v6")
    for jj in range(4): A(f"v_add_u32 v{12+jj}, {jj*(32768-1024)}, v7")
    A("s_cmp_eq_u32 s17, 0\ns_cselect_b32 s35, 0, 8192\ns_cselect_b32 s14, 19, 22\ns_cselect_b32 s58, 15, 18\ns_cselect_b32 s59, 13, 16")
    A("s_lshl_b32 s89, 1, s58\ns_lshl_b32 s58, s23, s58\ns_lshl_b32 s59, s18, s59\ns_add_u32 s58, s58, s59")
    A("v_lshl_add_u32 v7, v1, 8, s58")
    for jj in range(4): A(f"v_add_u32 v{16+jj}, {jj*(2048-1024)}, v7\nv_add_u32 v{16+jj}, v{16+jj}, v{3+(jj&1)}")
    A("s_lshl_b32 s3, s18, 21\ns_lshl_b32 s59, s20, 8\ns_add_u32 s3, s3, s59\nv_lshl_add_u32 v7, v2, 11, s3\nv_add_u32 v7, v7, v6")
    for jj in range(4): A(f"v_add_u32 v{20+jj}, {jj*(8192-1024)}, v7")
    A("s_mul_i32 s59, s20, s35\ns_add_u32 s58, s58, s59\nv_lshl_add_u32 v7, v2, 8, s58\nv_xor_b32 v5, v5, v2\nv_lshlrev_b32 v5, 4, v5")
    for jj in range(4): A(f"v_xor_b32 v{24+jj}, {jj*64}, v5\nv_add_u32 v{24+jj}, v{24+jj}, v7")
    A(f"s_lshl_b32 s56, s20, 1\ns_and_b32 s3, s19, {g2}\ns_add_u32 s56, s56, s3")
    A("v_lshl_add_u32 v28, v0, 7, s58")
    def order(r):
        if D < 0: return [p ^ (r & (g1-1)) for p in range(16)]
        seq = []
        for p in range(16):
            t = p + D if (p + D) % 4 == r and p + D < 16 and p + D not in seq else min(x for x in range(16) if x not in seq)
            seq.append(t)
        return seq
    A("s_add_u32 s3, s19, s20\ns_and_b32 s3, s3, 3")
    for r in range(4):
        v = sum(t << (4*p) for p, t in enumerate(order(r)))
        if r == 0: A(f"s_mov_b32 s40, {v & 0xffffffff:#x}\ns_mov_b32 s41, {v >> 32:#x}")
        else: A(f"s_cmp_eq_u32 s3, {r}\ns_cselect_b32 s40, {v & 0xffffffff:#x}, s40\ns_cselect_b32 s41, {v >> 32:#x}, s41")
    A(f"s_sub_u32 s3, s3, {max(D,0)}\ns_and_b32 s3, s3, {3 if D >= 0 else 0}\ns_cmp_eq_u32 s3, s22\ns_cselect_b32 s100, 0, 99")
    A("s_lshl_b32 s3, s22, 2\ns_lshr_b64 s[40:41], s[40:41], s3")
    A(f"s_lshl_b32 s57, s22, 15\ns_add_u32 s57, s57, {RB}")
    A("v_and_b32 v30, 3, v0\nv_lshlrev_b32 v30, 8, v30\nv_add_u32 v30, 256, v30\nv_cmp_lt_u32 vcc, 3, v0\nv_cndmask_b32 v30, v30, 16, vcc\nv_mov_b32 v31, s3\nv_mov_b32 v33, 16")
    A("s_waitcnt lgkmcnt(0)\ns_barrier\ns_mov_b32 s88, s29\ns_sub_u32 s29, s22, 3")
    A("s_mov_b32 s4, s24\ns_and_b32 s5, s25, 0xffff\ns_mov_b32 s6, 0x100000\ns_mov_b32 s7, 0x20000")
    A("s_mov_b32 s8, s30\ns_and_b32 s9, s31, 0xffff\ns_mov_b32 s10, 0x800000\ns_mov_b32 s11, 0x20000")
    A("s_lshl_b32 s14, 1, s14\ns_mov_b32 s12, s26\ns_and_b32 s13, s27, 0xffff\ns_mov_b32 s15, 0x20000")
    A("s_mov_b32 s48, s28\ns_and_b32 s49, s88, 0xffff\ns_mov_b32 s50, s14\ns_mov_b32 s51, 0x20000")
    A("s_mov_b32 s52, s32\ns_and_b32 s53, s33, 0xffff\ns_mov_b32 s54, 0x800000\ns_mov_b32 s55, 0x20000")
    nl = [0]
    def tls(i):
        if tl: A(f"s_memrealtime s[94:95]\ns_add_u32 s93, s29, 3\ns_lshr_b32 s93, s93, 2\ns_lshl_b32 s93, s93, 1\ns_add_u32 m0, s93, {i}\ns_waitcnt lgkmcnt(0)\nv_writelane_b32 v34, s94, m0")
    def pre():
        n = nl[0]; nl[0] += 1
        A(f"s_branch L_pe{n}\nL_pw{n}:\ns_sub_u32 s92, s92, 1\ns_cmp_lt_i32 s92, 0\ns_cbranch_scc1 L_px{n}\ns_sleep {sl}\nL_pe{n}:\nds_read_b32 v32, v30\ns_waitcnt lgkmcnt(0)\nv_cmp_gt_i32 vcc, s29, v32\ns_cbranch_vccnz L_pw{n}\nL_px{n}:")
        tls(0)
    def issue(srd, vb, so, step, fl, g0):
        for g in range(g0, g0 + 4):
            A(f"s_add_u32 m0, s57, {g*4096}")
            if g > g0: A(f"s_add_u32 {so}, {so}, {step[(g-g0-1) % len(step)]}")
            else: A("s_nop 0")
            for jj in range(4): A(f"buffer_load_dwordx4 v{vb+jj}, {srd}, {so} offen offset:{jj*1024} {fl} lds")
            if g + 1 == tok: A("s_add_u32 s3, s29, 1\nv_mov_b32 v32, s3\nds_write_b32 v33, v32")
    def post(mid=None):
        A("s_add_u32 s3, s29, 4\nv_mov_b32 v35, s3\ns_waitcnt vmcnt(0)")
        if mid: A(mid)
        A("ds_write_b32 v31, v35")
        tls(1)
        A("s_add_u32 s29, s29, 4")
    stamp()
    A("L_l1:")
    pre()
    def fills():
        A("s_add_u32 s3, s21, s34\ns_lshl_b32 s3, s3, 15\nv_lshlrev_b32 v36, 4, v0\ns_and_b32 s45, s45, 0xffff")
        for r in range(4): A(f"v_mov_b32 v{40+r}, -1")
        for g in range(8):
            for jj in range(4): A(f"buffer_store_dwordx4 v[40:43], v36, s[44:47], s3 offen offset:{jj*1024} {fsc}")
            if g < 7: A("s_add_u32 s3, s3, 4096")
    def touch(srd):
        A("s_mov_b32 s3, 0")
        for g in range(4): A(f"buffer_load_dword v29, v28, {srd}, s3 offen\ns_add_u32 s3, s3, s89")
    for it in range(1, 4):
        if it in (fi, fi+1, ki, vi):
            A(f"s_cmp_lg_u32 s100, {it}\ns_cbranch_scc1 L_x{it}")
            if it == fi+1: A("s_add_u32 s3, s21, s34\nv_mov_b32 v36, s3\nv_mov_b32 v37, 1\ns_mov_b64 exec, 1\ns_waitcnt vmcnt(0)\nglobal_store_byte v36, v37, s[38:39] sc1\ns_mov_b64 exec, -1")
            if it == fi: fills()
            if it == ki: touch("s[12:15]")
            if it == vi: touch("s[48:51]")
            A(f"L_x{it}:")
    A("s_and_b32 s3, s40, 15\ns_lshr_b64 s[40:41], s[40:41], 16\ns_lshl_b32 s42, s3, 19\ns_lshl_b32 s43, s3, 7")
    issue("s[8:11]", 12, "s42", [1 << 17], ntw, 0)
    issue("s[4:7]", 8, "s43", [1 << 16], ntx, 4)
    A("s_add_u32 s100, s100, 1")
    if fi == 0:
        A("s_cmp_lg_u32 s100, 1\ns_cbranch_scc1 L_ns")
        fills()
        A("s_add_u32 s3, s29, 4\nv_mov_b32 v35, s3\ns_waitcnt vmcnt(32)\ns_branch L_nw")
    A("L_ns:")
    post("L_nw:")
    A("s_cmp_lt_i32 s29, 13\ns_cbranch_scc1 L_l1")
    stamp()
    A("s_cmp_lg_u32 s22, 0\ns_cbranch_scc1 L_l2\ns_sub_u32 s59, s89, 4096\ns_mov_b32 s42, 0\ns_lshl_b32 s43, s89, 1")
    pre()
    issue("s[12:15]", 24, "s42", [4096, "s59"], ntk, 0)
    issue("s[12:15]", 24, "s43", [4096, "s59"], ntk, 4)
    post()
    A("L_l2:")
    pre()
    A("s_cmp_lg_u32 s29, 18\ns_cbranch_scc1 L_nfl\ns_load_dwordx8 s[80:87], s[38:39], s21 glc\nL_nfl:")
    A("s_sub_u32 s3, s29, 14\ns_xor_b32 s3, s56, s3\ns_lshl_b32 s42, s3, 17\ns_lshr_b32 s43, s3, 1\ns_mul_i32 s43, s43, s35\ns_and_b32 s3, s3, 1\ns_lshl_b32 s3, s3, 7\ns_add_u32 s43, s43, s3")
    issue("s[52:55]", 20, "s42", [1 << 15], ntw, 0)
    issue("s[48:51]", 16, "s43", ["s89"], ntv, 4)
    post("s_cmp_eq_u32 s29, 18\ns_cbranch_scc1 L_fchk\nL_fok:")
    A("s_cmp_lt_i32 s29, 30\ns_cbranch_scc1 L_l2")
    stamp()
    if stamps: A("s_and_b32 s45, s45, 0xffff")
    stamp_store(1)
    if tl: A(f"s_lshl_b32 s3, s2, 2\ns_add_u32 s3, s3, s22\ns_lshl_b32 s3, s3, 8\ns_add_u32 s3, s3, {STAMP + (1<<20)}\nv_lshlrev_b32 v1, 2, v0\nbuffer_store_dword v34, v1, s[44:47], s3 offen\ns_waitcnt vmcnt(0)")
    role[0] = 0
    A("s_endpgm")
    A("L_fchk:\ns_waitcnt lgkmcnt(0)")
    for i in range(0, 8, 4): A(f"s_and_b64 s[{80+i}:{81+i}], s[{80+i}:{81+i}], s[{82+i}:{83+i}]")
    A("s_and_b64 s[80:81], s[80:81], s[84:85]\ns_and_b32 s80, s80, s81\ns_cmp_eq_u32 s80, 0x01010101\ns_cbranch_scc1 L_fok")
    A("v_and_b32 v1, 7, v0\nv_lshl_add_u32 v1, v1, 2, s21\ns_mov_b32 s33, 0x40000\ns_mov_b32 s80, 0x01010101\nL_fp1:\nglobal_load_dword v2, v1, s[38:39] sc1\ns_waitcnt vmcnt(0)")
    A("v_cmp_ne_u32 vcc, s80, v2\ns_cbranch_vccz L_fok\ns_sub_u32 s33, s33, 1\ns_cbranch_scc1 L_fok\ns_sleep 8\ns_branch L_fp1")
    nst[0] = 0
    A("L_compute:")
    if prc: A(f"s_setprio {prc}")
    A("s_lshl_b32 s3, s16, 8\ns_add_u32 s3, s3, 256\nv_add_u32 v16, s3, v13\nds_write_b32 v16, v12")
    ACC, OUT, HELD, WF, XF, PF = 64, 128, 192, 16, 48, 56
    A("v_lshrrev_b32 v10, 5, v0\nv_bfe_u32 v11, v0, 2, 2\nv_bfe_u32 v12, v0, 4, 1\nv_and_b32 v13, 1, v0\nv_bfe_u32 v14, v0, 1, 1")
    A("v_lshl_add_u32 v15, v10, 3, v11\nv_lshlrev_b32 v15, 8, v15\nv_lshl_add_u32 v15, v11, 6, v15\nv_lshl_add_u32 v15, v12, 5, v15\nv_lshl_add_u32 v15, v13, 4, v15\nv_lshl_add_u32 v2, v14, 3, v15")
    A(f"v_add_u32 v2, {RB}, v2")
    for b in range(1, 4): A(f"v_xor_b32 v{2+b}, {b*64}, v2")
    A("v_and_b32 v11, 31, v0\nv_bfe_u32 v12, v0, 1, 3\nv_xor_b32 v12, v12, v10\nv_lshlrev_b32 v12, 4, v12\nv_lshl_add_u32 v12, v11, 7, v12")
    A(f"s_lshl_b32 s3, s16, 12\ns_add_u32 s3, s3, {16384+RB}\nv_add_u32 v6, s3, v12")
    for s in range(1, 4): A(f"v_xor_b32 v{6+s}, {s*32}, v6")
    A("v_lshlrev_b32 v1, 4, v0")
    for r in range(64): A(f"v_mov_b32 v{ACC+r}, 0")
    A("s_lshl_b32 s23, s19, 2\ns_add_u32 s23, s23, s16")
    A("s_waitcnt lgkmcnt(0)\ns_barrier")
    A("s_lshl_b32 s25, s18, 3\ns_add_u32 s25, s25, s21\ns_lshl_b32 s24, s25, 15\ns_lshl_b32 s3, s16, 13\ns_add_u32 s24, s24, s3\ns_add_u32 s25, s25, s20")
    A("s_lshl_b32 s34, s20, 15\ns_add_u32 s34, s34, s24\ns_mov_b32 s35, s34")
    A("v_mov_b32 v13, v16\nv_mov_b32 v12, 0\nv_mov_b32 v11, 0")
    A("s_and_b32 s45, s45, 0xffff")
    A("s_mov_b32 s12, s36\ns_and_b32 s13, s37, 0xffff\ns_mov_b32 s14, 0x200000\ns_mov_b32 s15, 0x20000")
    A("s_mov_b32 s26, 0")
    def rd_w(s, b, buf):
        A(f"ds_read_b64_tr_b16 v[{WF+16*buf+4*b}:{WF+16*buf+4*b+1}], v{2+b} offset:{s*4096}")
        A(f"ds_read_b64_tr_b16 v[{WF+16*buf+4*b+2}:{WF+16*buf+4*b+3}], v{2+b} offset:{s*4096+1024}")
    def rd_x(s, buf): A(f"ds_read_b128 v[{XF+4*buf}:{XF+4*buf+3}], v{6+s}")
    def mf(ph, b, buf, first):
        w = f"v[{WF+16*buf+4*b}:{WF+16*buf+4*b+3}]"; x = f"v[{XF+4*buf}:{XF+4*buf+3}]"; a = f"v[{ACC+16*b}:{ACC+16*b+15}]"
        c = "0" if first else a
        if hack16:
            for h in range(2):
                r0 = ACC+16*b+8*buf+4*h
                xx = f"v[{XF+4*(buf^h)}:{XF+4*(buf^h)+3}]"
                A(f"v_mfma_f32_16x16x32_bf16 v[{r0}:{r0+3}], {w}, {xx}, v[{r0}:{r0+3}]")
            return
        A(f"v_mfma_f32_32x32x16_bf16 {a}, {w}, {x}, {c}" if ph == 1 else f"v_mfma_f32_32x32x16_bf16 {a}, {x}, {w}, {c}")
    retry = []
    nw = [0]
    def adv(): A(f"s_add_u32 s26, s26, 1\ns_cmp_eq_u32 s26, {S}\ns_cselect_b32 s26, 0, s26\ns_cselect_b32 s27, {-(S-1)*32768 & 0xffffffff}, s28\nv_add_u32 v12, 1, v12\nv_lshlrev_b32 v11, 2, s26")
    def sig(): A("ds_write_b32 v13, v12\nds_read_b32 v10, v11")
    def rdy():
        n = nw[0]; nw[0] += 1
        A(f"L_rc{n}:\ns_waitcnt lgkmcnt(0)\nv_cmp_le_u32 vcc, v10, v12\ns_cbranch_vccnz L_rw{n}\nL_rx{n}:")
        retry.append(f"L_rw{n}:\ns_sub_u32 s92, s92, 1\ns_cmp_lt_i32 s92, 0\ns_cbranch_scc1 L_rx{n}\nds_read_b32 v10, v11\ns_branch L_rc{n}")
    def tile(ph, first=False, extra=None, tail=None):
        extra = extra or {}
        for s in range(3):
            buf = s & 1
            for b in range(4):
                A(f"s_waitcnt lgkmcnt({6 if b == 0 else 7})")
                mf(ph, b, buf, first and s == 0)
                if b == 0: rd_x(s+1, buf ^ 1)
                rd_w(s+1, b, buf ^ 1)
                if (s, b) in extra: A(extra[(s, b)])
                if s == 2 and b == 0: adv()
        if tail == "last":
            for b in range(4): A(f"s_waitcnt lgkmcnt({6-2*b})"); mf(ph, b, 1, False)
            return
        sig()
        A("s_waitcnt lgkmcnt(8)"); mf(ph, 0, 1, False)
        for r in range(2, 6): A(f"v_add_u32 v{r}, s27, v{r}")
        A("s_waitcnt lgkmcnt(6)"); mf(ph, 1, 1, False)
        for r in range(6, 10): A(f"v_add_u32 v{r}, s27, v{r}")
        rdy()
        if tail == "k":
            mf(ph, 2, 1, False)
            for ks in range(8):
                A(f"v_xor_b32 v15, {ks*32}, v14\nds_read_b128 v[{OUT+4*ks}:{OUT+4*ks+3}], v15")
                if ks == 3: mf(ph, 3, 1, False)
            adv(); sig()
            for r in range(2, 10): A(f"v_add_u32 v{r}, s27, v{r}")
            return
        rd_x(0, 0); rd_w(0, 0, 0)
        mf(ph, 2, 1, False)
        rd_w(0, 1, 0); rd_w(0, 2, 0)
        mf(ph, 3, 1, False)
        rd_w(0, 3, 0)
    A("s_mov_b32 s28, 32768")
    A(f"v_and_b32 v15, 31, v0\nv_and_b32 v14, 15, v0\nv_lshrrev_b32 v10, 5, v0\nv_xor_b32 v14, v14, v10\nv_lshlrev_b32 v14, 4, v14\nv_lshl_add_u32 v14, v15, 8, v14")
    A(f"s_lshl_b32 s3, s16, 13\ns_add_u32 s3, s3, {RB}\nv_add_u32 v14, s3, v14\nv_mov_b32 v10, 0")
    stamp()
    rdy()
    stamp()
    rd_x(0, 0)
    for b in range(4): rd_w(0, b, 0)
    A("s_mov_b32 s29, 15\nL_p1:")
    tile(1)
    A("s_sub_u32 s29, s29, 1\ns_cmp_lg_u32 s29, 0\ns_cbranch_scc1 L_p1")
    tile(1, tail="k")
    stamp()
    KF, SA, PP = 128, 160, 176
    for i in range(32): A(f"v_cvt_pk_bf16_f32 v{HELD+i}, v{ACC+2*i}, v{ACC+2*i+1}")
    A("s_waitcnt lgkmcnt(0)\ns_nop 0")
    for ks in range(8):
        A(f"v_mfma_f32_32x32x16_bf16 v[{SA}:{SA+15}], v[{KF+4*ks}:{KF+4*ks+3}], v[{HELD+4*ks}:{HELD+4*ks+3}], " + ("0" if ks == 0 else f"v[{SA}:{SA+15}]"))
    import struct
    c = struct.unpack("<I", struct.pack("<f", math.log2(math.e) / math.sqrt(128.0)))[0]
    A(f"s_mov_b32 s30, {c:#x}\ns_mov_b32 s3, s34\ns_nop 0")
    for r in range(16): A(f"v_mov_b32 v{OUT+r}, 0")
    A(f"v_max3_f32 v14, v{SA}, v{SA+1}, v{SA+2}")
    for r in range(3, 15, 2): A(f"v_max3_f32 v14, v14, v{SA+r}, v{SA+r+1}")
    A(f"v_max_f32 v14, v14, v{SA+15}\nv_mov_b32 v15, v14\ns_nop 1\nv_permlane32_swap_b32 v14, v15\ns_nop 1\nv_max_f32 v14, v14, v15\nv_mul_f32 v14, s30, v14")
    for r in range(16): A(f"v_fma_f32 v{SA+r}, v{SA+r}, s30, -v14")
    for r in range(16): A(f"v_exp_f32 v{SA+r}, v{SA+r}")
    A(f"s_nop 0\nv_add_f32 v14, v{SA}, v{SA+1}\nv_add_f32 v15, v{SA+2}, v{SA+3}")
    for r in range(4, 16, 2): A(f"v_add_f32 v14, v14, v{SA+r}\nv_add_f32 v15, v15, v{SA+r+1}")
    A("v_add_f32 v14, v14, v15\nv_mov_b32 v15, v14\ns_nop 1\nv_permlane32_swap_b32 v14, v15\ns_nop 1\nv_add_f32 v14, v14, v15\nv_rcp_f32 v14, v14\ns_nop 0")
    for r in range(16): A(f"v_mul_f32 v{SA+r}, v{SA+r}, v14")
    for i in range(8): A(f"v_cvt_pk_bf16_f32 v{PF+i}, v{SA+2*i}, v{SA+2*i+1}")
    A(f"buffer_store_dwordx4 v[{PF}:{PF+3}], v1, s[44:47], s3 offen sc1\nbuffer_store_dwordx4 v[{PF+4}:{PF+7}], v1, s[44:47], s3 offen offset:1024 sc1")
    rdy()
    rd_x(0, 0)
    for b in range(4): rd_w(0, b, 0)
    for r in range(16, 64): A(f"v_mov_b32 v{OUT+r}, 0")
    stamp()
    def cvt(b, half, slot): return "\n".join(f"v_cvt_pk_bf16_f32 v{HELD+32*slot+8*b+4*half+i}, v{ACC+16*b+8*half+2*i}, v{ACC+16*b+8*half+2*i+1}" for i in range(4))
    def pm(b, s, slot, pf=PF): A(f"v_mfma_f32_32x32x16_bf16 v[{OUT+16*b}:{OUT+16*b+15}], v[{HELD+32*slot+8*b+4*s}:{HELD+32*slot+8*b+4*s+3}], v[{pf+4*s}:{pf+4*s+3}], v[{OUT+16*b}:{OUT+16*b+15}]")
    def ld2(pf, so, fl, off=0): return f"buffer_load_dwordx4 v[{pf}:{pf+3}], v1, s[44:47], {so} offen offset:{off} {fl}\nbuffer_load_dwordx4 v[{pf+4}:{pf+7}], v1, s[44:47], {so} offen offset:{off+1024} {fl}"
    def pload(pf, so): return f"s_xor_b32 {so}, s31, s20\ns_lshl_b32 {so}, {so}, 15\ns_add_u32 {so}, {so}, s24\ns_add_u32 s31, s31, 1\n" + ld2(pf, so, psc)
    def mx(regs):
        r = [f"v_max3_u32 v10, v{regs[0]}, v{regs[1]}, v{regs[2]}"]
        for i in range(3, len(regs) - 1, 2): r.append(f"v_max3_u32 v10, v10, v{regs[i]}, v{regs[i+1]}")
        r.append(f"v_max_u32 v10, v10, v{regs[-1]}\nv_cmp_eq_u32 vcc, -1, v10")
        return "\n".join(r)
    def chk(name, lst):
        regs = [p+i for p, _, _ in lst for i in range(8)]
        retry.append(f"L_rt{name}:\ns_sub_u32 s33, s33, 1\ns_cmp_lt_i32 s33, 0\ns_cbranch_scc1 L_ok{name}\n" + "\n".join(ld2(p, so, "sc1", off) for p, so, off in lst) + f"\ns_branch L_ck{name}")
        return f"L_ck{name}:\ns_waitcnt vmcnt(0)\n" + mx(regs) + f"\ns_cbranch_vccnz L_rt{name}\nL_ok{name}:"
    def cvtpm():
        A(cvt(0, 0, 0)); A(cvt(0, 1, 0))
        for b in range(3):
            pm(b, 0, 0); A(cvt(b+1, 0, 0)); pm(b, 1, 0); A(cvt(b+1, 1, 0))
        pm(3, 0, 0); A("s_nop 1"); pm(3, 1, 0)
    A("s_mov_b32 s31, 1\ns_mov_b32 s33, 0x40000")
    tile(2, first=True); tile(2); cvtpm()
    tile(2, first=True); tile(2)
    for b in range(4):
        if b == 2: A("s_nop 7")
        A(cvt(b, 0, 1)); A(cvt(b, 1, 1))
    stamp()
    P1 = HELD + 24
    tile(2, first=True, extra={(0, 1): pload(P1, "s4") + "\n" + pload(PF, "s5")})
    tile(2, extra={(2, 1): chk("a", [(P1, "s4", 0), (PF, "s5", 0)])})
    for b in range(4): pm(b, 0, 1, P1); pm(b, 1, 1, P1)
    cvtpm()
    stamp()
    A("s_mov_b32 s29, 4\nL_p2:")
    tile(2, first=True, extra={(0, 1): pload(PF, "s5")})
    tile(2, extra={(2, 1): chk("b", [(PF, "s5", 0)])})
    cvtpm()
    A("s_sub_u32 s29, s29, 1\ns_cmp_lg_u32 s29, 0\ns_cbranch_scc1 L_p2")
    tile(2, first=True, extra={(0, 1): pload(PF, "s5")})
    tile(2, extra={(2, 1): chk("d", [(PF, "s5", 0)])}, tail="last")
    cvtpm()
    stamp()
    A("s_lshl_b32 s4, s18, 18\ns_sub_u32 s5, s34, s4\ns_add_u32 s6, s34, 2048\ns_add_u32 s7, s34, 6144")
    for b in range(4):
        A(f"s_cmp_eq_u32 s18, {b}\ns_cbranch_scc1 L_own{b}")
        A(f"s_sub_u32 s3, s18, {b}\ns_and_b32 s3, s3, 3\ns_lshl_b32 s3, s3, 11\ns_add_u32 s3, s3, s5")
        for i in range(8): A(f"v_cvt_pk_bf16_f32 v{HELD+8*b+i}, v{OUT+16*b+2*i}, v{OUT+16*b+2*i+1}")
        for i in range(2): A(f"buffer_store_dwordx4 v[{HELD+8*b+4*i}:{HELD+8*b+4*i+3}], v1, s[44:47], s3 offen offset:{1024*i} sc1")
        A(f"s_branch L_nxt{b}\nL_own{b}:")
        for r in range(16): A(f"v_mov_b32 v{ACC+r}, v{OUT+16*b+r}")
        A(f"L_nxt{b}:\ns_add_u32 s5, s5, {1<<18}")
    IN = ACC + 16
    lst = [(IN, "s6", 0), (IN+8, "s6", 2048), (IN+16, "s7", 0)]
    for p, so, off in lst: A(ld2(p, so, "sc1", off))
    A("v_and_b32 v11, 31, v0\nv_lshrrev_b32 v12, 5, v0\nv_lshlrev_b32 v12, 4, v12\nv_lshl_add_u32 v12, v11, 12, v12\ns_mov_b32 s30, 0xffff0000")
    A("s_lshl_b32 s3, s23, 17\ns_lshl_b32 s4, s17, 11\ns_add_u32 s3, s3, s4\ns_lshl_b32 s4, s20, 8\ns_add_u32 s3, s3, s4\ns_lshl_b32 s4, s18, 6\ns_add_u32 s3, s3, s4")
    stamp()
    A(chk("c", lst))
    stamp()
    A("s_waitcnt lgkmcnt(0)")
    for i in range(24): A(f"v_lshlrev_b32 v{OUT+i}, 16, v{IN+i}\nv_and_b32 v{IN+i}, s30, v{IN+i}")
    for k in range(3):
        for i in range(8): A(f"v_add_f32 v{ACC+2*i}, v{ACC+2*i}, v{OUT+8*k+i}\nv_add_f32 v{ACC+2*i+1}, v{ACC+2*i+1}, v{IN+8*k+i}")
    for i in range(8): A(f"v_cvt_pk_bf16_f32 v{WF+i}, v{ACC+2*i}, v{ACC+2*i+1}")
    A(f"buffer_store_dwordx4 v[{WF}:{WF+3}], v12, s[12:15], s3 offen {osc}\nbuffer_store_dwordx4 v[{WF+4}:{WF+7}], v12, s[12:15], s3 offen offset:32 {osc}")
    if stamps or probe is not None: A("s_waitcnt vmcnt(0)")
    stamp()
    stamp_store(0)
    if probe is not None:
        if pwg >= 0: A(f"s_cmp_lg_u32 s2, {pwg}\ns_cbranch_scc1 L_end")
        if probe == -1: A("s_mov_b32 s62, s90")
        A("s_add_u32 s62, s62, 5000\nL_spin:\ns_sleep 4\ns_memrealtime s[64:65]\ns_waitcnt lgkmcnt(0)\ns_sub_u32 s64, s64, s62\ns_cmp_lt_i32 s64, 0\ns_cbranch_scc1 L_spin")
    A("L_end:\ns_endpgm")
    for r in retry: A(r)
    o.append(f'''.section .rodata,"a"
.p2align 6
.amdhsa_kernel {NAME}_kernel
  .amdhsa_next_free_vgpr 256
  .amdhsa_next_free_sgpr 102
  .amdhsa_accum_offset 256
  .amdhsa_group_segment_fixed_size 0
  .amdhsa_kernarg_size 104
  .amdhsa_user_sgpr_count 2
  .amdhsa_user_sgpr_kernarg_segment_ptr 1
  .amdhsa_system_sgpr_workgroup_id_x 1
.end_amdhsa_kernel''')
    return "\n".join(o) + "\n"

if __name__ == "__main__":
    kw = {}
    out = sys.argv[1]
    for a in sys.argv[2:]:
        k, v = a.split("=")
        kw[k] = int(v) if v.lstrip("-").isdigit() else v.replace('+', ' ')
    open(out, "w").write(gen(**kw))
```

```python
import sys, math
NAME = "concat_heads__gqa_block_cached__mha_block_cached__near_ridge"
HDR = open("cdna_kernels/%s.s.ref" % NAME).read().split("; @launch")[0]

def gen(D=1, tok=3, split=0, sl=1, prl=0, prc=0, ntw="", ntx="", ntk="", ntv="", stamps=False, g1=4, g2=1, fi=0, ki=-1, vi=-1, fsc="sc1", psc="", noload=0, nocomp=0, tl=0, hack16=0, osc="", probe=None, pwg=-1):
    o = []
    role = [0]
    def A(s):
        for l in s.split("\n"):
            if noload and "offen" in l and l.strip().endswith("lds"): continue
            if nocomp & 1 and l.strip().startswith("v_mfma"): continue
            if nocomp & 2 and l.strip().startswith("ds_read") and "ds_read_b32" not in l: continue
            o.append("    " + l.strip() if not l.strip().endswith(":") else l.strip())
    S = 4; RB = 2048
    LDS = RB + S * 32768
    STAMP = 1 << 26
    nst = [0]
    def stamp():
        if probe is not None and role[0] == 0:
            if nst[0] == 0: A("s_memrealtime s[60:61]\ns_waitcnt lgkmcnt(0)\ns_mov_b32 s62, s60")
            elif nst[0] == probe: A("s_memrealtime s[62:63]\ns_waitcnt lgkmcnt(0)")
            nst[0] += 1
        if stamps:
            if nst[0] == 0: A("s_memtime s[96:97]")
            A(f"s_memrealtime s[{60+2*nst[0]}:{61+2*nst[0]}]\ns_memtime s[98:99]\ns_waitcnt lgkmcnt(0)")
            nst[0] += 1
    def stamp_store(role):
        if stamps:
            A(f"s_lshl_b32 s3, s2, 10\ns_lshl_b32 s4, s16, 7\ns_add_u32 s3, s3, s4\ns_add_u32 s3, s3, {STAMP}\nv_mov_b32 v1, 0")
            for i in range(nst[0]):
                A(f"v_mov_b32 v2, s{60+2*i}\nbuffer_store_dword v2, v1, s[44:47], s3 offen offset:{4*i}")
            A(f"s_sub_u32 s98, s98, s96\nv_mov_b32 v2, s98\nbuffer_store_dword v2, v1, s[44:47], s3 offen offset:120\nv_mov_b32 v2, {nst[0]}\nbuffer_store_dword v2, v1, s[44:47], s3 offen offset:124")
            A("v_mov_b32 v2, s90\nbuffer_store_dword v2, v1, s[44:47], s3 offen offset:116\ns_waitcnt vmcnt(0)")
    o.append(HDR + f"; @launch grid=(256,1,1) block=(512,1,1) lds={LDS}")
    o.append(f'.amdgcn_target "amdgcn-amd-amdhsa--gfx950"\n.text\n.globl {NAME}_kernel\n.p2align 8\n.type {NAME}_kernel,@function\n{NAME}_kernel:')
    if stamps or probe == -1: A("s_memrealtime s[90:91]")
    A("s_cmp_ge_u32 s2, 256\ns_cbranch_scc1 L_end")
    A("s_bfe_u32 s17, s2, 0x10002\ns_and_b32 s18, s2, 3\ns_lshr_b32 s19, s2, 6\ns_bfe_u32 s20, s2, 0x30003")
    A("s_mul_i32 s3, s17, 40\ns_add_u32 s4, s0, s3\ns_addc_u32 s5, s1, 0")
    A("s_load_dwordx8 s[24:31], s[4:5], 0\ns_load_dwordx2 s[32:33], s[4:5], 32\ns_load_dwordx4 s[36:39], s[0:1], 80\ns_load_dwordx2 s[44:45], s[0:1], 96")
    A("v_lshrrev_b32 v1, 6, v0\nv_and_b32 v0, 63, v0\nv_readfirstlane_b32 s16, v1")
    A("s_lshl_b32 s21, s17, 2\ns_add_u32 s21, s21, s19\ns_lshl_b32 s21, s21, 5")
    A("s_mov_b32 s92, 0x1000000\ns_mov_b32 s46, 0x10000000\ns_mov_b32 s47, 0x20000")
    A("v_lshlrev_b32 v13, 2, v0\nv_mov_b32 v12, 0\ns_cmp_ge_u32 s16, 4\ns_cbranch_scc0 L_compute")
    role[0] = 1
    if prl: A(f"s_setprio {prl}")
    A("s_and_b32 s22, s16, 3")
    A("v_cmp_eq_u32 vcc, 4, v0\nv_cndmask_b32 v12, v12, -3, vcc\nds_write_b32 v13, v12")
    A("s_lshl_b32 s23, s19, 2")
    A("s_lshl_b32 s34, s18, 3\ns_add_u32 s34, s34, s20")
    A("v_lshrrev_b32 v1, 3, v0\nv_lshrrev_b32 v2, 4, v0\nv_and_b32 v3, 7, v0\nv_xor_b32 v3, v3, v2\nv_lshlrev_b32 v3, 4, v3")
    A("v_xor_b32 v4, 64, v3")
    A("v_and_b32 v5, 15, v0\nv_lshlrev_b32 v6, 2, v2\nv_xor_b32 v6, v5, v6\nv_lshlrev_b32 v6, 4, v6")
    A("s_lshl_b32 s3, s23, 16")
    A("v_lshl_add_u32 v7, v1, 11, s3")
    for jj in range(4): A(f"v_add_u32 v{8+jj}, {jj*(16384-1024)}, v7\nv_add_u32 v{8+jj}, v{8+jj}, v{3+(jj&1)}")
    A("s_lshl_b32 s3, s34, 8\nv_lshl_add_u32 v7, v2, 13, s3\nv_add_u32 v7, v7, v6")
    for jj in range(4): A(f"v_add_u32 v{12+jj}, {jj*(32768-1024)}, v7")
    A("s_cmp_eq_u32 s17, 0\ns_cselect_b32 s35, 0, 8192\ns_cselect_b32 s14, 19, 22\ns_cselect_b32 s58, 15, 18\ns_cselect_b32 s59, 13, 16")
    A("s_lshl_b32 s89, 1, s58\ns_lshl_b32 s58, s23, s58\ns_lshl_b32 s59, s18, s59\ns_add_u32 s58, s58, s59")
    A("v_lshl_add_u32 v7, v1, 8, s58")
    for jj in range(4): A(f"v_add_u32 v{16+jj}, {jj*(2048-1024)}, v7\nv_add_u32 v{16+jj}, v{16+jj}, v{3+(jj&1)}")
    A("s_lshl_b32 s3, s18, 21\ns_lshl_b32 s59, s20, 8\ns_add_u32 s3, s3, s59\nv_lshl_add_u32 v7, v2, 11, s3\nv_add_u32 v7, v7, v6")
    for jj in range(4): A(f"v_add_u32 v{20+jj}, {jj*(8192-1024)}, v7")
    A("s_mul_i32 s59, s20, s35\ns_add_u32 s58, s58, s59\nv_lshl_add_u32 v7, v2, 8, s58\nv_xor_b32 v5, v5, v2\nv_lshlrev_b32 v5, 4, v5")
    for jj in range(4): A(f"v_xor_b32 v{24+jj}, {jj*64}, v5\nv_add_u32 v{24+jj}, v{24+jj}, v7")
    A(f"s_lshl_b32 s56, s20, 1\ns_and_b32 s3, s19, {g2}\ns_add_u32 s56, s56, s3")
    A("v_lshl_add_u32 v28, v0, 7, s58")
    def order(r):
        if D < 0: return [p ^ (r & (g1-1)) for p in range(16)]
        seq = []
        for p in range(16):
            t = p + D if (p + D) % 4 == r and p + D < 16 and p + D not in seq else min(x for x in range(16) if x not in seq)
            seq.append(t)
        return seq
    A("s_add_u32 s3, s19, s20\ns_and_b32 s3, s3, 3")
    for r in range(4):
        v = sum(t << (4*p) for p, t in enumerate(order(r)))
        if r == 0: A(f"s_mov_b32 s40, {v & 0xffffffff:#x}\ns_mov_b32 s41, {v >> 32:#x}")
        else: A(f"s_cmp_eq_u32 s3, {r}\ns_cselect_b32 s40, {v & 0xffffffff:#x}, s40\ns_cselect_b32 s41, {v >> 32:#x}, s41")
    A(f"s_sub_u32 s3, s3, {max(D,0)}\ns_and_b32 s3, s3, {3 if D >= 0 else 0}\ns_cmp_eq_u32 s3, s22\ns_cselect_b32 s100, 0, 99")
    A("s_lshl_b32 s3, s22, 2\ns_lshr_b64 s[40:41], s[40:41], s3")
    A(f"s_lshl_b32 s57, s22, 15\ns_add_u32 s57, s57, {RB}")
    A("v_and_b32 v30, 3, v0\nv_lshlrev_b32 v30, 8, v30\nv_add_u32 v30, 256, v30\nv_cmp_lt_u32 vcc, 3, v0\nv_cndmask_b32 v30, v30, 16, vcc\nv_mov_b32 v31, s3\nv_mov_b32 v33, 16")
    A("s_waitcnt lgkmcnt(0)\ns_barrier\ns_mov_b32 s88, s29\ns_sub_u32 s29, s22, 3")
    A("s_mov_b32 s4, s24\ns_and_b32 s5, s25, 0xffff\ns_mov_b32 s6, 0x100000\ns_mov_b32 s7, 0x20000")
    A("s_mov_b32 s8, s30\ns_and_b32 s9, s31, 0xffff\ns_mov_b32 s10, 0x800000\ns_mov_b32 s11, 0x20000")
    A("s_lshl_b32 s14, 1, s14\ns_mov_b32 s12, s26\ns_and_b32 s13, s27, 0xffff\ns_mov_b32 s15, 0x20000")
    A("s_mov_b32 s48, s28\ns_and_b32 s49, s88, 0xffff\ns_mov_b32 s50, s14\ns_mov_b32 s51, 0x20000")
    A("s_mov_b32 s52, s32\ns_and_b32 s53, s33, 0xffff\ns_mov_b32 s54, 0x800000\ns_mov_b32 s55, 0x20000")
    nl = [0]
    def tls(i):
        if tl: A(f"s_memrealtime s[94:95]\ns_add_u32 s93, s29, 3\ns_lshr_b32 s93, s93, 2\ns_lshl_b32 s93, s93, 1\ns_add_u32 m0, s93, {i}\ns_waitcnt lgkmcnt(0)\nv_writelane_b32 v34, s94, m0")
    def pre():
        n = nl[0]; nl[0] += 1
        A(f"s_branch L_pe{n}\nL_pw{n}:\ns_sub_u32 s92, s92, 1\ns_cmp_lt_i32 s92, 0\ns_cbranch_scc1 L_px{n}\ns_sleep {sl}\nL_pe{n}:\nds_read_b32 v32, v30\ns_waitcnt lgkmcnt(0)\nv_cmp_gt_i32 vcc, s29, v32\ns_cbranch_vccnz L_pw{n}\nL_px{n}:")
        tls(0)
    def issue(srd, vb, so, step, fl, g0):
        for g in range(g0, g0 + 4):
            A(f"s_add_u32 m0, s57, {g*4096}")
            if g > g0: A(f"s_add_u32 {so}, {so}, {step[(g-g0-1) % len(step)]}")
            else: A("s_nop 0")
            for jj in range(4): A(f"buffer_load_dwordx4 v{vb+jj}, {srd}, {so} offen offset:{jj*1024} {fl} lds")
            if g + 1 == tok: A("s_add_u32 s3, s29, 1\nv_mov_b32 v32, s3\nds_write_b32 v33, v32")
    def post(mid=None):
        A("s_add_u32 s3, s29, 4\nv_mov_b32 v35, s3\ns_waitcnt vmcnt(0)")
        if mid: A(mid)
        A("ds_write_b32 v31, v35")
        tls(1)
        A("s_add_u32 s29, s29, 4")
    stamp()
    A("L_l1:")
    pre()
    def fills():
        A("s_add_u32 s3, s21, s34\ns_lshl_b32 s3, s3, 15\nv_lshlrev_b32 v36, 4, v0\ns_and_b32 s45, s45, 0xffff")
        for r in range(4): A(f"v_mov_b32 v{40+r}, -1")
        for g in range(8):
            for jj in range(4): A(f"buffer_store_dwordx4 v[40:43], v36, s[44:47], s3 offen offset:{jj*1024} {fsc}")
            if g < 7: A("s_add_u32 s3, s3, 4096")
    def touch(srd):
        A("s_mov_b32 s3, 0")
        for g in range(4): A(f"buffer_load_dword v29, v28, {srd}, s3 offen\ns_add_u32 s3, s3, s89")
    for it in range(1, 4):
        if it in (fi, fi+1, ki, vi):
            A(f"s_cmp_lg_u32 s100, {it}\ns_cbranch_scc1 L_x{it}")
            if it == fi+1: A("s_add_u32 s3, s21, s34\nv_mov_b32 v36, s3\nv_mov_b32 v37, 1\ns_mov_b64 exec, 1\ns_waitcnt vmcnt(0)\nglobal_store_byte v36, v37, s[38:39] sc1\ns_mov_b64 exec, -1")
            if it == fi: fills()
            if it == ki: touch("s[12:15]")
            if it == vi: touch("s[48:51]")
            A(f"L_x{it}:")
    A("s_and_b32 s3, s40, 15\ns_lshr_b64 s[40:41], s[40:41], 16\ns_lshl_b32 s42, s3, 19\ns_lshl_b32 s43, s3, 7")
    issue("s[8:11]", 12, "s42", [1 << 17], ntw, 0)
    issue("s[4:7]", 8, "s43", [1 << 16], ntx, 4)
    A("s_add_u32 s100, s100, 1")
    if fi == 0:
        A("s_cmp_lg_u32 s100, 1\ns_cbranch_scc1 L_ns")
        fills()
        A("s_add_u32 s3, s29, 4\nv_mov_b32 v35, s3\ns_waitcnt vmcnt(32)\ns_branch L_nw")
    A("L_ns:")
    post("L_nw:")
    A("s_cmp_lt_i32 s29, 13\ns_cbranch_scc1 L_l1")
    stamp()
    A("s_cmp_lg_u32 s22, 0\ns_cbranch_scc1 L_l2\ns_sub_u32 s59, s89, 4096\ns_mov_b32 s42, 0\ns_lshl_b32 s43, s89, 1")
    pre()
    issue("s[12:15]", 24, "s42", [4096, "s59"], ntk, 0)
    issue("s[12:15]", 24, "s43", [4096, "s59"], ntk, 4)
    post()
    A("L_l2:")
    pre()
    A("s_cmp_lg_u32 s29, 18\ns_cbranch_scc1 L_nfl\ns_load_dwordx8 s[80:87], s[38:39], s21 glc\nL_nfl:")
    A("s_sub_u32 s3, s29, 14\ns_xor_b32 s3, s56, s3\ns_lshl_b32 s42, s3, 17\ns_lshr_b32 s43, s3, 1\ns_mul_i32 s43, s43, s35\ns_and_b32 s3, s3, 1\ns_lshl_b32 s3, s3, 7\ns_add_u32 s43, s43, s3")
    issue("s[52:55]", 20, "s42", [1 << 15], ntw, 0)
    issue("s[48:51]", 16, "s43", ["s89"], ntv, 4)
    post("s_cmp_eq_u32 s29, 18\ns_cbranch_scc1 L_fchk\nL_fok:")
    A("s_cmp_lt_i32 s29, 30\ns_cbranch_scc1 L_l2")
    stamp()
    if stamps: A("s_and_b32 s45, s45, 0xffff")
    stamp_store(1)
    if tl: A(f"s_lshl_b32 s3, s2, 2\ns_add_u32 s3, s3, s22\ns_lshl_b32 s3, s3, 8\ns_add_u32 s3, s3, {STAMP + (1<<20)}\nv_lshlrev_b32 v1, 2, v0\nbuffer_store_dword v34, v1, s[44:47], s3 offen\ns_waitcnt vmcnt(0)")
    role[0] = 0
    A("s_endpgm")
    A("L_fchk:\ns_waitcnt lgkmcnt(0)")
    for i in range(0, 8, 4): A(f"s_and_b64 s[{80+i}:{81+i}], s[{80+i}:{81+i}], s[{82+i}:{83+i}]")
    A("s_and_b64 s[80:81], s[80:81], s[84:85]\ns_and_b32 s80, s80, s81\ns_cmp_eq_u32 s80, 0x01010101\ns_cbranch_scc1 L_fok")
    A("v_and_b32 v1, 7, v0\nv_lshl_add_u32 v1, v1, 2, s21\ns_mov_b32 s33, 0x40000\ns_mov_b32 s80, 0x01010101\nL_fp1:\nglobal_load_dword v2, v1, s[38:39] sc1\ns_waitcnt vmcnt(0)")
    A("v_cmp_ne_u32 vcc, s80, v2\ns_cbranch_vccz L_fok\ns_sub_u32 s33, s33, 1\ns_cbranch_scc1 L_fok\ns_sleep 8\ns_branch L_fp1")
    nst[0] = 0
    A("L_compute:")
    if prc: A(f"s_setprio {prc}")
    A("s_lshl_b32 s3, s16, 8\ns_add_u32 s3, s3, 256\nv_add_u32 v16, s3, v13\nds_write_b32 v16, v12")
    ACC, OUT, HELD, WF, XF, PF = 64, 128, 192, 16, 48, 56
    A("v_lshrrev_b32 v10, 5, v0\nv_bfe_u32 v11, v0, 2, 2\nv_bfe_u32 v12, v0, 4, 1\nv_and_b32 v13, 1, v0\nv_bfe_u32 v14, v0, 1, 1")
    A("v_lshl_add_u32 v15, v10, 3, v11\nv_lshlrev_b32 v15, 8, v15\nv_lshl_add_u32 v15, v11, 6, v15\nv_lshl_add_u32 v15, v12, 5, v15\nv_lshl_add_u32 v15, v13, 4, v15\nv_lshl_add_u32 v2, v14, 3, v15")
    A(f"v_add_u32 v2, {RB}, v2")
    for b in range(1, 4): A(f"v_xor_b32 v{2+b}, {b*64}, v2")
    A("v_and_b32 v11, 31, v0\nv_bfe_u32 v12, v0, 1, 3\nv_xor_b32 v12, v12, v10\nv_lshlrev_b32 v12, 4, v12\nv_lshl_add_u32 v12, v11, 7, v12")
    A(f"s_lshl_b32 s3, s16, 12\ns_add_u32 s3, s3, {16384+RB}\nv_add_u32 v6, s3, v12")
    for s in range(1, 4): A(f"v_xor_b32 v{6+s}, {s*32}, v6")
    A("v_lshlrev_b32 v1, 4, v0")
    for r in range(64): A(f"v_mov_b32 v{ACC+r}, 0")
    A("s_lshl_b32 s23, s19, 2\ns_add_u32 s23, s23, s16")
    A("s_waitcnt lgkmcnt(0)\ns_barrier")
    A("s_lshl_b32 s25, s18, 3\ns_add_u32 s25, s25, s21\ns_lshl_b32 s24, s25, 15\ns_lshl_b32 s3, s16, 13\ns_add_u32 s24, s24, s3\ns_add_u32 s25, s25, s20")
    A("s_lshl_b32 s34, s20, 15\ns_add_u32 s34, s34, s24\ns_mov_b32 s35, s34")
    A("v_mov_b32 v13, v16\nv_mov_b32 v12, 0\nv_mov_b32 v11, 0")
    A("s_and_b32 s45, s45, 0xffff")
    A("s_mov_b32 s12, s36\ns_and_b32 s13, s37, 0xffff\ns_mov_b32 s14, 0x200000\ns_mov_b32 s15, 0x20000")
    A("s_mov_b32 s26, 0")
    def rd_w(s, b, buf):
        A(f"ds_read_b64_tr_b16 v[{WF+16*buf+4*b}:{WF+16*buf+4*b+1}], v{2+b} offset:{s*4096}")
        A(f"ds_read_b64_tr_b16 v[{WF+16*buf+4*b+2}:{WF+16*buf+4*b+3}], v{2+b} offset:{s*4096+1024}")
    def rd_x(s, buf): A(f"ds_read_b128 v[{XF+4*buf}:{XF+4*buf+3}], v{6+s}")
    def mf(ph, b, buf, first):
        w = f"v[{WF+16*buf+4*b}:{WF+16*buf+4*b+3}]"; x = f"v[{XF+4*buf}:{XF+4*buf+3}]"; a = f"v[{ACC+16*b}:{ACC+16*b+15}]"
        c = "0" if first else a
        if hack16:
            for h in range(2):
                r0 = ACC+16*b+8*buf+4*h
                xx = f"v[{XF+4*(buf^h)}:{XF+4*(buf^h)+3}]"
                A(f"v_mfma_f32_16x16x32_bf16 v[{r0}:{r0+3}], {w}, {xx}, v[{r0}:{r0+3}]")
            return
        A(f"v_mfma_f32_32x32x16_bf16 {a}, {w}, {x}, {c}" if ph == 1 else f"v_mfma_f32_32x32x16_bf16 {a}, {x}, {w}, {c}")
    retry = []
    nw = [0]
    def adv(): A(f"s_add_u32 s26, s26, 1\ns_cmp_eq_u32 s26, {S}\ns_cselect_b32 s26, 0, s26\ns_cselect_b32 s27, {-(S-1)*32768 & 0xffffffff}, s28\nv_add_u32 v12, 1, v12\nv_lshlrev_b32 v11, 2, s26")
    def sig(): A("ds_write_b32 v13, v12\nds_read_b32 v10, v11")
    def rdy():
        n = nw[0]; nw[0] += 1
        A(f"L_rc{n}:\ns_waitcnt lgkmcnt(0)\nv_cmp_le_u32 vcc, v10, v12\ns_cbranch_vccnz L_rw{n}\nL_rx{n}:")
        retry.append(f"L_rw{n}:\ns_sub_u32 s92, s92, 1\ns_cmp_lt_i32 s92, 0\ns_cbranch_scc1 L_rx{n}\nds_read_b32 v10, v11\ns_branch L_rc{n}")
    def tile(ph, first=False, extra=None, tail=None):
        extra = extra or {}
        for s in range(3):
            buf = s & 1
            for b in range(4):
                A(f"s_waitcnt lgkmcnt({6 if b == 0 else 7})")
                mf(ph, b, buf, first and s == 0)
                if b == 0: rd_x(s+1, buf ^ 1)
                rd_w(s+1, b, buf ^ 1)
                if (s, b) in extra: A(extra[(s, b)])
                if s == 2 and b == 0: adv()
        if tail == "last":
            for b in range(4): A(f"s_waitcnt lgkmcnt({6-2*b})"); mf(ph, b, 1, False)
            return
        sig()
        A("s_waitcnt lgkmcnt(8)"); mf(ph, 0, 1, False)
        for r in range(2, 6): A(f"v_add_u32 v{r}, s27, v{r}")
        A("s_waitcnt lgkmcnt(6)"); mf(ph, 1, 1, False)
        for r in range(6, 10): A(f"v_add_u32 v{r}, s27, v{r}")
        rdy()
        if tail == "k":
            mf(ph, 2, 1, False)
            for ks in range(8):
                A(f"v_xor_b32 v15, {ks*32}, v14\nds_read_b128 v[{OUT+4*ks}:{OUT+4*ks+3}], v15")
                if ks == 3: mf(ph, 3, 1, False)
            adv(); sig()
            for r in range(2, 10): A(f"v_add_u32 v{r}, s27, v{r}")
            return
        rd_x(0, 0); rd_w(0, 0, 0)
        mf(ph, 2, 1, False)
        rd_w(0, 1, 0); rd_w(0, 2, 0)
        mf(ph, 3, 1, False)
        rd_w(0, 3, 0)
    A("s_mov_b32 s28, 32768")
    A(f"v_and_b32 v15, 31, v0\nv_and_b32 v14, 15, v0\nv_lshrrev_b32 v10, 5, v0\nv_xor_b32 v14, v14, v10\nv_lshlrev_b32 v14, 4, v14\nv_lshl_add_u32 v14, v15, 8, v14")
    A(f"s_lshl_b32 s3, s16, 13\ns_add_u32 s3, s3, {RB}\nv_add_u32 v14, s3, v14\nv_mov_b32 v10, 0")
    stamp()
    rdy()
    stamp()
    rd_x(0, 0)
    for b in range(4): rd_w(0, b, 0)
    if split:
        A(f"s_mov_b32 s29, {split}\nL_p0:")
        tile(1)
        A("s_sub_u32 s29, s29, 1\ns_cmp_lg_u32 s29, 0\ns_cbranch_scc1 L_p0")
        stamp()
    A(f"s_mov_b32 s29, {15-split}\nL_p1:")
    tile(1)
    A("s_sub_u32 s29, s29, 1\ns_cmp_lg_u32 s29, 0\ns_cbranch_scc1 L_p1")
    tile(1, tail="k")
    stamp()
    KF, SA, PP = 128, 160, 176
    for i in range(32): A(f"v_cvt_pk_bf16_f32 v{HELD+i}, v{ACC+2*i}, v{ACC+2*i+1}")
    A("s_waitcnt lgkmcnt(0)\ns_nop 0")
    for ks in range(8):
        A(f"v_mfma_f32_32x32x16_bf16 v[{SA}:{SA+15}], v[{KF+4*ks}:{KF+4*ks+3}], v[{HELD+4*ks}:{HELD+4*ks+3}], " + ("0" if ks == 0 else f"v[{SA}:{SA+15}]"))
    import struct
    c = struct.unpack("<I", struct.pack("<f", math.log2(math.e) / math.sqrt(128.0)))[0]
    A(f"s_mov_b32 s30, {c:#x}\ns_mov_b32 s3, s34\ns_nop 0")
    for r in range(16): A(f"v_mov_b32 v{OUT+r}, 0")
    A(f"v_max3_f32 v14, v{SA}, v{SA+1}, v{SA+2}")
    for r in range(3, 15, 2): A(f"v_max3_f32 v14, v14, v{SA+r}, v{SA+r+1}")
    A(f"v_max_f32 v14, v14, v{SA+15}\nv_mov_b32 v15, v14\ns_nop 1\nv_permlane32_swap_b32 v14, v15\ns_nop 1\nv_max_f32 v14, v14, v15\nv_mul_f32 v14, s30, v14")
    for r in range(16): A(f"v_fma_f32 v{SA+r}, v{SA+r}, s30, -v14")
    for r in range(16): A(f"v_exp_f32 v{SA+r}, v{SA+r}")
    A(f"s_nop 0\nv_add_f32 v14, v{SA}, v{SA+1}\nv_add_f32 v15, v{SA+2}, v{SA+3}")
    for r in range(4, 16, 2): A(f"v_add_f32 v14, v14, v{SA+r}\nv_add_f32 v15, v15, v{SA+r+1}")
    A("v_add_f32 v14, v14, v15\nv_mov_b32 v15, v14\ns_nop 1\nv_permlane32_swap_b32 v14, v15\ns_nop 1\nv_add_f32 v14, v14, v15\nv_rcp_f32 v14, v14\ns_nop 0")
    for r in range(16): A(f"v_mul_f32 v{SA+r}, v{SA+r}, v14")
    for i in range(8): A(f"v_cvt_pk_bf16_f32 v{PF+i}, v{SA+2*i}, v{SA+2*i+1}")
    A(f"buffer_store_dwordx4 v[{PF}:{PF+3}], v1, s[44:47], s3 offen sc1\nbuffer_store_dwordx4 v[{PF+4}:{PF+7}], v1, s[44:47], s3 offen offset:1024 sc1")
    rdy()
    rd_x(0, 0)
    for b in range(4): rd_w(0, b, 0)
    for r in range(16, 64): A(f"v_mov_b32 v{OUT+r}, 0")
    stamp()
    def cvt(b, half, slot): return "\n".join(f"v_cvt_pk_bf16_f32 v{HELD+32*slot+8*b+4*half+i}, v{ACC+16*b+8*half+2*i}, v{ACC+16*b+8*half+2*i+1}" for i in range(4))
    def pm(b, s, slot, pf=PF): A(f"v_mfma_f32_32x32x16_bf16 v[{OUT+16*b}:{OUT+16*b+15}], v[{HELD+32*slot+8*b+4*s}:{HELD+32*slot+8*b+4*s+3}], v[{pf+4*s}:{pf+4*s+3}], v[{OUT+16*b}:{OUT+16*b+15}]")
    def ld2(pf, so, fl, off=0): return f"buffer_load_dwordx4 v[{pf}:{pf+3}], v1, s[44:47], {so} offen offset:{off} {fl}\nbuffer_load_dwordx4 v[{pf+4}:{pf+7}], v1, s[44:47], {so} offen offset:{off+1024} {fl}"
    def pload(pf, so): return f"s_xor_b32 {so}, s31, s20\ns_lshl_b32 {so}, {so}, 15\ns_add_u32 {so}, {so}, s24\ns_add_u32 s31, s31, 1\n" + ld2(pf, so, psc)
    def mx(regs):
        r = [f"v_max3_u32 v10, v{regs[0]}, v{regs[1]}, v{regs[2]}"]
        for i in range(3, len(regs) - 1, 2): r.append(f"v_max3_u32 v10, v10, v{regs[i]}, v{regs[i+1]}")
        r.append(f"v_max_u32 v10, v10, v{regs[-1]}\nv_cmp_eq_u32 vcc, -1, v10")
        return "\n".join(r)
    def chk(name, lst):
        regs = [p+i for p, _, _ in lst for i in range(8)]
        retry.append(f"L_rt{name}:\ns_sub_u32 s33, s33, 1\ns_cmp_lt_i32 s33, 0\ns_cbranch_scc1 L_ok{name}\n" + "\n".join(ld2(p, so, "sc1", off) for p, so, off in lst) + f"\ns_branch L_ck{name}")
        return f"L_ck{name}:\ns_waitcnt vmcnt(0)\n" + mx(regs) + f"\ns_cbranch_vccnz L_rt{name}\nL_ok{name}:"
    def cvtpm():
        A(cvt(0, 0, 0)); A(cvt(0, 1, 0))
        for b in range(3):
            pm(b, 0, 0); A(cvt(b+1, 0, 0)); pm(b, 1, 0); A(cvt(b+1, 1, 0))
        pm(3, 0, 0); A("s_nop 1"); pm(3, 1, 0)
    A("s_mov_b32 s31, 1\ns_mov_b32 s33, 0x40000")
    tile(2, first=True); tile(2); cvtpm()
    tile(2, first=True); tile(2)
    for b in range(4):
        if b == 2: A("s_nop 7")
        A(cvt(b, 0, 1)); A(cvt(b, 1, 1))
    stamp()
    P1 = HELD + 24
    tile(2, first=True, extra={(0, 1): pload(P1, "s4") + "\n" + pload(PF, "s5")})
    tile(2, extra={(2, 1): chk("a", [(P1, "s4", 0), (PF, "s5", 0)])})
    for b in range(4): pm(b, 0, 1, P1); pm(b, 1, 1, P1)
    cvtpm()
    stamp()
    A("s_mov_b32 s29, 4\nL_p2:")
    tile(2, first=True, extra={(0, 1): pload(PF, "s5")})
    tile(2, extra={(2, 1): chk("b", [(PF, "s5", 0)])})
    cvtpm()
    A("s_sub_u32 s29, s29, 1\ns_cmp_lg_u32 s29, 0\ns_cbranch_scc1 L_p2")
    tile(2, first=True, extra={(0, 1): pload(PF, "s5")})
    tile(2, extra={(2, 1): chk("d", [(PF, "s5", 0)])}, tail="last")
    cvtpm()
    stamp()
    A("s_lshl_b32 s4, s18, 18\ns_sub_u32 s5, s34, s4\ns_add_u32 s6, s34, 2048\ns_add_u32 s7, s34, 6144")
    for b in range(4):
        A(f"s_cmp_eq_u32 s18, {b}\ns_cbranch_scc1 L_own{b}")
        A(f"s_sub_u32 s3, s18, {b}\ns_and_b32 s3, s3, 3\ns_lshl_b32 s3, s3, 11\ns_add_u32 s3, s3, s5")
        for i in range(8): A(f"v_cvt_pk_bf16_f32 v{HELD+8*b+i}, v{OUT+16*b+2*i}, v{OUT+16*b+2*i+1}")
        for i in range(2): A(f"buffer_store_dwordx4 v[{HELD+8*b+4*i}:{HELD+8*b+4*i+3}], v1, s[44:47], s3 offen offset:{1024*i} sc1")
        A(f"s_branch L_nxt{b}\nL_own{b}:")
        for r in range(16): A(f"v_mov_b32 v{ACC+r}, v{OUT+16*b+r}")
        A(f"L_nxt{b}:\ns_add_u32 s5, s5, {1<<18}")
    IN = ACC + 16
    lst = [(IN, "s6", 0), (IN+8, "s6", 2048), (IN+16, "s7", 0)]
    for p, so, off in lst: A(ld2(p, so, "sc1", off))
    A("v_and_b32 v11, 31, v0\nv_lshrrev_b32 v12, 5, v0\nv_lshlrev_b32 v12, 4, v12\nv_lshl_add_u32 v12, v11, 12, v12\ns_mov_b32 s30, 0xffff0000")
    A("s_lshl_b32 s3, s23, 17\ns_lshl_b32 s4, s17, 11\ns_add_u32 s3, s3, s4\ns_lshl_b32 s4, s20, 8\ns_add_u32 s3, s3, s4\ns_lshl_b32 s4, s18, 6\ns_add_u32 s3, s3, s4")
    stamp()
    A(chk("c", lst))
    stamp()
    A("s_waitcnt lgkmcnt(0)")
    for i in range(24): A(f"v_lshlrev_b32 v{OUT+i}, 16, v{IN+i}\nv_and_b32 v{IN+i}, s30, v{IN+i}")
    for k in range(3):
        for i in range(8): A(f"v_add_f32 v{ACC+2*i}, v{ACC+2*i}, v{OUT+8*k+i}\nv_add_f32 v{ACC+2*i+1}, v{ACC+2*i+1}, v{IN+8*k+i}")
    for i in range(8): A(f"v_cvt_pk_bf16_f32 v{WF+i}, v{ACC+2*i}, v{ACC+2*i+1}")
    A(f"buffer_store_dwordx4 v[{WF}:{WF+3}], v12, s[12:15], s3 offen {osc}\nbuffer_store_dwordx4 v[{WF+4}:{WF+7}], v12, s[12:15], s3 offen offset:32 {osc}")
    if stamps or probe is not None: A("s_waitcnt vmcnt(0)")
    stamp()
    stamp_store(0)
    if probe is not None:
        if pwg >= 0: A(f"s_cmp_lg_u32 s2, {pwg}\ns_cbranch_scc1 L_end")
        if probe == -1: A("s_mov_b32 s62, s90")
        A("s_add_u32 s62, s62, 5000\nL_spin:\ns_sleep 4\ns_memrealtime s[64:65]\ns_waitcnt lgkmcnt(0)\ns_sub_u32 s64, s64, s62\ns_cmp_lt_i32 s64, 0\ns_cbranch_scc1 L_spin")
    A("L_end:\ns_endpgm")
    for r in retry: A(r)
    o.append(f'''.section .rodata,"a"
.p2align 6
.amdhsa_kernel {NAME}_kernel
  .amdhsa_next_free_vgpr 256
  .amdhsa_next_free_sgpr 102
  .amdhsa_accum_offset 256
  .amdhsa_group_segment_fixed_size 0
  .amdhsa_kernarg_size 104
  .amdhsa_user_sgpr_count 2
  .amdhsa_user_sgpr_kernarg_segment_ptr 1
  .amdhsa_system_sgpr_workgroup_id_x 1
.end_amdhsa_kernel''')
    return "\n".join(o) + "\n"

if __name__ == "__main__":
    kw = {}
    out = sys.argv[1]
    for a in sys.argv[2:]:
        k, v = a.split("=")
        kw[k] = int(v) if v.lstrip("-").isdigit() else v.replace('+', ' ')
    open(out, "w").write(gen(**kw))
```

```python
import sys, math
NAME = "concat_heads__gqa_block_cached__mha_block_cached__near_ridge"
HDR = open("cdna_kernels/%s.s.ref" % NAME).read().split("; @launch")[0]

def gen(D=1, tok=3, split=0, allhit=0, hk=0, D2=1, swp=1, sl=1, prl=0, prc=0, ntw="", ntx="", ntk="", ntv="", stamps=False, g1=4, g2=1, fi=0, ki=-1, vi=-1, fsc="sc1", psc="", noload=0, nocomp=0, tl=0, hack16=0, osc="", probe=None, pwg=-1):
    o = []
    role = [0]
    def A(s):
        for l in s.split("\n"):
            if noload and "offen" in l and l.strip().endswith("lds"): continue
            if nocomp & 1 and l.strip().startswith("v_mfma"): continue
            if nocomp & 2 and l.strip().startswith("ds_read") and "ds_read_b32" not in l: continue
            o.append("    " + l.strip() if not l.strip().endswith(":") else l.strip())
    S = 4; RB = 2048
    LDS = RB + S * 32768
    STAMP = 1 << 26
    nst = [0]
    def stamp():
        if probe is not None and role[0] == 0:
            if nst[0] == 0: A("s_memrealtime s[60:61]\ns_waitcnt lgkmcnt(0)\ns_mov_b32 s62, s60")
            elif nst[0] == probe: A("s_memrealtime s[62:63]\ns_waitcnt lgkmcnt(0)")
            nst[0] += 1
        if stamps:
            if nst[0] == 0: A("s_memtime s[96:97]")
            A(f"s_memrealtime s[{60+2*nst[0]}:{61+2*nst[0]}]\ns_memtime s[98:99]\ns_waitcnt lgkmcnt(0)")
            nst[0] += 1
    def stamp_store(role):
        if stamps:
            A(f"s_lshl_b32 s3, s2, 10\ns_lshl_b32 s4, s16, 7\ns_add_u32 s3, s3, s4\ns_add_u32 s3, s3, {STAMP}\nv_mov_b32 v1, 0")
            for i in range(nst[0]):
                A(f"v_mov_b32 v2, s{60+2*i}\nbuffer_store_dword v2, v1, s[44:47], s3 offen offset:{4*i}")
            A(f"s_sub_u32 s98, s98, s96\nv_mov_b32 v2, s98\nbuffer_store_dword v2, v1, s[44:47], s3 offen offset:120\nv_mov_b32 v2, {nst[0]}\nbuffer_store_dword v2, v1, s[44:47], s3 offen offset:124")
            A("v_mov_b32 v2, s90\nbuffer_store_dword v2, v1, s[44:47], s3 offen offset:116\ns_waitcnt vmcnt(0)")
    o.append(HDR + f"; @launch grid=(256,1,1) block=(512,1,1) lds={LDS}")
    o.append(f'.amdgcn_target "amdgcn-amd-amdhsa--gfx950"\n.text\n.globl {NAME}_kernel\n.p2align 8\n.type {NAME}_kernel,@function\n{NAME}_kernel:')
    if stamps or probe == -1: A("s_memrealtime s[90:91]")
    A("s_cmp_ge_u32 s2, 256\ns_cbranch_scc1 L_end")
    A("s_bfe_u32 s17, s2, 0x10002\ns_and_b32 s18, s2, 3\ns_lshr_b32 s19, s2, 6\ns_bfe_u32 s20, s2, 0x30003")
    A("s_mul_i32 s3, s17, 40\ns_add_u32 s4, s0, s3\ns_addc_u32 s5, s1, 0")
    A("s_load_dwordx8 s[24:31], s[4:5], 0\ns_load_dwordx2 s[32:33], s[4:5], 32\ns_load_dwordx4 s[36:39], s[0:1], 80\ns_load_dwordx2 s[44:45], s[0:1], 96")
    A("v_lshrrev_b32 v1, 6, v0\nv_and_b32 v0, 63, v0\nv_readfirstlane_b32 s16, v1")
    A("s_lshl_b32 s21, s17, 2\ns_add_u32 s21, s21, s19\ns_lshl_b32 s21, s21, 5")
    A("s_mov_b32 s92, 0x1000000\ns_mov_b32 s46, 0x10000000\ns_mov_b32 s47, 0x20000")
    def order2(r):
        seq = [0]
        for p in range(1, 8):
            seq.append(p + D2 if D2 and (p + D2) % 4 == r and p + D2 < 8 and p + D2 not in seq else min(x for x in range(8) if x not in seq))
        return seq
    for r in range(4):
        v = sum(t << (4*p) for p, t in enumerate(order2(r)))
        A(f"s_mov_b32 s101, {v:#x}" if r == 0 else f"s_cmp_eq_u32 s19, {r}\ns_cselect_b32 s101, {v:#x}, s101")
    A("v_lshlrev_b32 v13, 2, v0\nv_mov_b32 v12, 0\ns_cmp_ge_u32 s16, 4\ns_cbranch_scc0 L_compute")
    role[0] = 1
    if prl: A(f"s_setprio {prl}")
    A("s_and_b32 s22, s16, 3")
    A("v_cmp_eq_u32 vcc, 4, v0\nv_cndmask_b32 v12, v12, -3, vcc\nds_write_b32 v13, v12")
    A("s_lshl_b32 s23, s19, 2")
    A("s_lshl_b32 s34, s18, 3\ns_add_u32 s34, s34, s20")
    A("v_lshrrev_b32 v1, 3, v0\nv_lshrrev_b32 v2, 4, v0\nv_and_b32 v3, 7, v0\nv_xor_b32 v3, v3, v2\nv_lshlrev_b32 v3, 4, v3")
    A("v_xor_b32 v4, 64, v3")
    A("v_and_b32 v5, 15, v0\nv_lshlrev_b32 v6, 2, v2\nv_xor_b32 v6, v5, v6\nv_lshlrev_b32 v6, 4, v6")
    A("s_lshl_b32 s3, s23, 16")
    A("v_lshl_add_u32 v7, v1, 11, s3")
    for jj in range(4): A(f"v_add_u32 v{8+jj}, {jj*(16384-1024)}, v7\nv_add_u32 v{8+jj}, v{8+jj}, v{3+(jj&1)}")
    A("s_lshl_b32 s3, s34, 8\nv_lshl_add_u32 v7, v2, 13, s3\nv_add_u32 v7, v7, v6")
    for jj in range(4): A(f"v_add_u32 v{12+jj}, {jj*(32768-1024)}, v7")
    A("s_cmp_eq_u32 s17, 0\ns_cselect_b32 s35, 0, 8192\ns_cselect_b32 s14, 19, 22\ns_cselect_b32 s58, 15, 18\ns_cselect_b32 s59, 13, 16")
    A("s_lshl_b32 s89, 1, s58\ns_lshl_b32 s58, s23, s58\ns_lshl_b32 s59, s18, s59\ns_add_u32 s58, s58, s59")
    A("v_lshl_add_u32 v7, v1, 8, s58")
    for jj in range(4): A(f"v_add_u32 v{16+jj}, {jj*(2048-1024)}, v7\nv_add_u32 v{16+jj}, v{16+jj}, v{3+(jj&1)}")
    A("s_lshl_b32 s3, s18, 21\ns_lshl_b32 s59, s20, 8\ns_add_u32 s3, s3, s59\nv_lshl_add_u32 v7, v2, 11, s3\nv_add_u32 v7, v7, v6")
    for jj in range(4): A(f"v_add_u32 v{20+jj}, {jj*(8192-1024)}, v7")
    A("s_mul_i32 s59, s20, s35\ns_add_u32 s58, s58, s59\nv_lshl_add_u32 v7, v2, 8, s58\nv_xor_b32 v5, v5, v2\nv_lshlrev_b32 v5, 4, v5")
    for jj in range(4): A(f"v_xor_b32 v{24+jj}, {jj*64}, v5\nv_add_u32 v{24+jj}, v{24+jj}, v7")
    A(f"s_lshl_b32 s56, s20, 1\ns_and_b32 s3, s19, {g2}\ns_add_u32 s56, s56, s3")
    A("v_lshl_add_u32 v28, v0, 7, s58")
    def order(r):
        if allhit: return [0]*16
        if D < 0: return [p ^ (r & (g1-1)) for p in range(16)]
        seq = []
        for p in range(16):
            t = p + D if (p + D) % 4 == r and p + D < 16 and p + D not in seq else min(x for x in range(16) if x not in seq)
            seq.append(t)
        return seq
    A("s_add_u32 s3, s19, s20\ns_and_b32 s3, s3, 3")
    for r in range(4):
        v = sum(t << (4*p) for p, t in enumerate(order(r)))
        if r == 0: A(f"s_mov_b32 s40, {v & 0xffffffff:#x}\ns_mov_b32 s41, {v >> 32:#x}")
        else: A(f"s_cmp_eq_u32 s3, {r}\ns_cselect_b32 s40, {v & 0xffffffff:#x}, s40\ns_cselect_b32 s41, {v >> 32:#x}, s41")
    A(f"s_sub_u32 s3, s3, {max(D,0)}\ns_and_b32 s3, s3, {3 if D >= 0 else 0}\ns_cmp_eq_u32 s3, s22\ns_cselect_b32 s100, 0, 99")
    A("s_lshl_b32 s3, s22, 2\ns_lshr_b64 s[40:41], s[40:41], s3")
    A(f"s_lshl_b32 s57, s22, 15\ns_add_u32 s57, s57, {RB}")
    A("v_and_b32 v30, 3, v0\nv_lshlrev_b32 v30, 8, v30\nv_add_u32 v30, 256, v30\nv_cmp_lt_u32 vcc, 3, v0\nv_cndmask_b32 v30, v30, 16, vcc\nv_mov_b32 v31, s3\nv_mov_b32 v33, 16")
    A("s_waitcnt lgkmcnt(0)\ns_barrier\ns_mov_b32 s88, s29\ns_sub_u32 s29, s22, 3")
    A("s_mov_b32 s4, s24\ns_and_b32 s5, s25, 0xffff\ns_mov_b32 s6, 0x100000\ns_mov_b32 s7, 0x20000")
    A("s_mov_b32 s8, s30\ns_and_b32 s9, s31, 0xffff\ns_mov_b32 s10, 0x800000\ns_mov_b32 s11, 0x20000")
    A("s_lshl_b32 s14, 1, s14\ns_mov_b32 s12, s26\ns_and_b32 s13, s27, 0xffff\ns_mov_b32 s15, 0x20000")
    A("s_mov_b32 s48, s28\ns_and_b32 s49, s88, 0xffff\ns_mov_b32 s50, s14\ns_mov_b32 s51, 0x20000")
    A("s_mov_b32 s52, s32\ns_and_b32 s53, s33, 0xffff\ns_mov_b32 s54, 0x800000\ns_mov_b32 s55, 0x20000")
    nl = [0]
    def tls(i):
        if tl: A(f"s_memrealtime s[94:95]\ns_add_u32 s93, s29, 3\ns_lshr_b32 s93, s93, 2\ns_lshl_b32 s93, s93, 1\ns_add_u32 m0, s93, {i}\ns_waitcnt lgkmcnt(0)\nv_writelane_b32 v34, s94, m0")
    def pre():
        n = nl[0]; nl[0] += 1
        A(f"s_branch L_pe{n}\nL_pw{n}:\ns_sub_u32 s92, s92, 1\ns_cmp_lt_i32 s92, 0\ns_cbranch_scc1 L_px{n}\ns_sleep {sl}\nL_pe{n}:\nds_read_b32 v32, v30\ns_waitcnt lgkmcnt(0)\nv_cmp_gt_i32 vcc, s29, v32\ns_cbranch_vccnz L_pw{n}\nL_px{n}:")
        tls(0)
    def issue(srd, vb, so, step, fl, g0, x=0):
        for g in range(g0, g0 + 4):
            A(f"s_add_u32 m0, s57, {(g^x)*4096}")
            if g > g0: A(f"s_add_u32 {so}, {so}, {step[(g-g0-1) % len(step)]}")
            else: A("s_nop 0")
            for jj in range(4): A(f"buffer_load_dwordx4 v{vb+jj}, {srd}, {so} offen offset:{jj*1024} {fl} lds")
            if g + 1 == tok: A("s_add_u32 s3, s29, 1\nv_mov_b32 v32, s3\nds_write_b32 v33, v32")
    def post(mid=None):
        A("s_add_u32 s3, s29, 4\nv_mov_b32 v35, s3\ns_waitcnt vmcnt(0)")
        if mid: A(mid)
        A("ds_write_b32 v31, v35")
        tls(1)
        A("s_add_u32 s29, s29, 4")
    stamp()
    A("L_l1:")
    pre()
    def fills():
        A("s_add_u32 s3, s21, s34\ns_lshl_b32 s3, s3, 15\nv_lshlrev_b32 v36, 4, v0\ns_and_b32 s45, s45, 0xffff")
        for r in range(4): A(f"v_mov_b32 v{40+r}, -1")
        for g in range(8):
            for jj in range(4): A(f"buffer_store_dwordx4 v[40:43], v36, s[44:47], s3 offen offset:{jj*1024} {fsc}")
            if g < 7: A("s_add_u32 s3, s3, 4096")
    def touch(srd):
        A("s_mov_b32 s3, 0")
        for g in range(4): A(f"buffer_load_dword v29, v28, {srd}, s3 offen\ns_add_u32 s3, s3, s89")
    for it in range(1, 4):
        if it in (fi, fi+1, ki, vi):
            A(f"s_cmp_lg_u32 s100, {it}\ns_cbranch_scc1 L_x{it}")
            if it == fi+1: A("s_add_u32 s3, s21, s34\nv_mov_b32 v36, s3\nv_mov_b32 v37, 1\ns_mov_b64 exec, 1\ns_waitcnt vmcnt(0)\nglobal_store_byte v36, v37, s[38:39] sc1\ns_mov_b64 exec, -1")
            if it == fi: fills()
            if it == ki: touch("s[12:15]")
            if it == vi: touch("s[48:51]")
            A(f"L_x{it}:")
    A("s_and_b32 s3, s40, 15\ns_lshr_b64 s[40:41], s[40:41], 16\ns_lshl_b32 s42, s3, 19\ns_lshl_b32 s43, s3, 7")
    issue("s[8:11]", 12, "s42", [1 << 17], ntw, 0)
    issue("s[4:7]", 8, "s43", [1 << 16], ntx, 4)
    A("s_add_u32 s100, s100, 1")
    if fi == 0:
        A("s_cmp_lg_u32 s100, 1\ns_cbranch_scc1 L_ns")
        fills()
        A("s_add_u32 s3, s29, 4\nv_mov_b32 v35, s3\ns_waitcnt vmcnt(32)\ns_branch L_nw")
    A("L_ns:")
    post("L_nw:")
    A("s_cmp_lt_i32 s29, 13\ns_cbranch_scc1 L_l1")
    stamp()
    A("s_cmp_lg_u32 s22, 0\ns_cbranch_scc1 L_l2\ns_sub_u32 s59, s89, 4096\ns_mov_b32 s42, 0\ns_lshl_b32 s43, s89, 1")
    pre()
    issue("s[12:15]", 24, "s42", [4096, "s59"], ntk, 0)
    issue("s[12:15]", 24, "s43", [4096, "s59"], ntk, 4)
    post()
    A("L_l2:")
    if swp: A("s_bitcmp1_b32 s22, 0\ns_cbranch_scc1 L_l21")
    for par in range(2 if swp else 1):
        A(f"L_l2{par}:")
        pre()
        if par == swp: A("s_cmp_lg_u32 s29, 18\ns_cbranch_scc1 L_nfl\ns_load_dwordx8 s[80:87], s[38:39], s21 glc\nL_nfl:")
        A("s_sub_u32 s3, s29, 14\ns_lshr_b32 s42, s3, 1\ns_lshl_b32 s42, s42, 2\ns_lshr_b32 s42, s101, s42\ns_and_b32 s42, s42, 7\ns_lshl_b32 s42, s42, 1\ns_and_b32 s3, s3, 1\ns_or_b32 s3, s3, s42")
        A("s_xor_b32 s3, s56, s3\ns_lshl_b32 s42, s3, 17\ns_lshr_b32 s43, s3, 1\ns_mul_i32 s43, s43, s35\ns_and_b32 s3, s3, 1\ns_lshl_b32 s3, s3, 7\ns_add_u32 s43, s43, s3")
        if par: issue("s[48:51]", 16, "s43", ["s89"], ntv, 0, 4); issue("s[52:55]", 20, "s42", [1 << 15], ntw, 4, 4)
        else: issue("s[52:55]", 20, "s42", [1 << 15], ntw, 0); issue("s[48:51]", 16, "s43", ["s89"], ntv, 4)
        post("s_cmp_eq_u32 s29, 18\ns_cbranch_scc1 L_fchk\nL_fok:" if par == swp else None)
        A(f"s_cmp_lt_i32 s29, 30\ns_cbranch_scc1 L_l2{par}")
        if par < swp: A("s_branch L_lend")
    A("L_lend:")
    stamp()
    if stamps: A("s_and_b32 s45, s45, 0xffff")
    stamp_store(1)
    if tl: A(f"s_lshl_b32 s3, s2, 2\ns_add_u32 s3, s3, s22\ns_lshl_b32 s3, s3, 8\ns_add_u32 s3, s3, {STAMP + (1<<20)}\nv_lshlrev_b32 v1, 2, v0\nbuffer_store_dword v34, v1, s[44:47], s3 offen\ns_waitcnt vmcnt(0)")
    role[0] = 0
    A("s_endpgm")
    A("L_fchk:\ns_waitcnt lgkmcnt(0)")
    for i in range(0, 8, 4): A(f"s_and_b64 s[{80+i}:{81+i}], s[{80+i}:{81+i}], s[{82+i}:{83+i}]")
    A("s_and_b64 s[80:81], s[80:81], s[84:85]\ns_and_b32 s80, s80, s81\ns_cmp_eq_u32 s80, 0x01010101\ns_cbranch_scc1 L_fok")
    A("v_and_b32 v1, 7, v0\nv_lshl_add_u32 v1, v1, 2, s21\ns_mov_b32 s33, 0x40000\ns_mov_b32 s80, 0x01010101\nL_fp1:\nglobal_load_dword v2, v1, s[38:39] sc1\ns_waitcnt vmcnt(0)")
    A("v_cmp_ne_u32 vcc, s80, v2\ns_cbranch_vccz L_fok\ns_sub_u32 s33, s33, 1\ns_cbranch_scc1 L_fok\ns_sleep 8\ns_branch L_fp1")
    nst[0] = 0
    A("L_compute:")
    if prc: A(f"s_setprio {prc}")
    A("s_lshl_b32 s3, s16, 8\ns_add_u32 s3, s3, 256\nv_add_u32 v16, s3, v13\nds_write_b32 v16, v12")
    ACC, OUT, HELD, WF, XF, PF = 64, 128, 192, 16, 48, 56
    A("v_lshrrev_b32 v10, 5, v0\nv_bfe_u32 v11, v0, 2, 2\nv_bfe_u32 v12, v0, 4, 1\nv_and_b32 v13, 1, v0\nv_bfe_u32 v14, v0, 1, 1")
    A("v_lshl_add_u32 v15, v10, 3, v11\nv_lshlrev_b32 v15, 8, v15\nv_lshl_add_u32 v15, v11, 6, v15\nv_lshl_add_u32 v15, v12, 5, v15\nv_lshl_add_u32 v15, v13, 4, v15\nv_lshl_add_u32 v2, v14, 3, v15")
    A(f"v_add_u32 v2, {RB}, v2")
    for b in range(1, 4): A(f"v_xor_b32 v{2+b}, {b*64}, v2")
    A("v_and_b32 v11, 31, v0\nv_bfe_u32 v12, v0, 1, 3\nv_xor_b32 v12, v12, v10\nv_lshlrev_b32 v12, 4, v12\nv_lshl_add_u32 v12, v11, 7, v12")
    A(f"s_lshl_b32 s3, s16, 12\ns_add_u32 s3, s3, {16384+RB}\nv_add_u32 v6, s3, v12")
    for s in range(1, 4): A(f"v_xor_b32 v{6+s}, {s*32}, v6")
    A("v_lshlrev_b32 v1, 4, v0")
    for r in range(64): A(f"v_mov_b32 v{ACC+r}, 0")
    A("s_lshl_b32 s23, s19, 2\ns_add_u32 s23, s23, s16")
    A("s_waitcnt lgkmcnt(0)\ns_barrier")
    A("s_lshl_b32 s25, s18, 3\ns_add_u32 s25, s25, s21\ns_lshl_b32 s24, s25, 15\ns_lshl_b32 s3, s16, 13\ns_add_u32 s24, s24, s3\ns_add_u32 s25, s25, s20")
    A("s_lshl_b32 s34, s20, 15\ns_add_u32 s34, s34, s24\ns_mov_b32 s35, s34")
    A("v_mov_b32 v13, v16\nv_mov_b32 v12, 0\nv_mov_b32 v11, 0")
    A("s_and_b32 s45, s45, 0xffff")
    A("s_mov_b32 s12, s36\ns_and_b32 s13, s37, 0xffff\ns_mov_b32 s14, 0x200000\ns_mov_b32 s15, 0x20000")
    A("s_mov_b32 s26, 0")
    def rd_w(s, b, buf):
        A(f"ds_read_b64_tr_b16 v[{WF+16*buf+4*b}:{WF+16*buf+4*b+1}], v{2+b} offset:{s*4096}")
        A(f"ds_read_b64_tr_b16 v[{WF+16*buf+4*b+2}:{WF+16*buf+4*b+3}], v{2+b} offset:{s*4096+1024}")
    def rd_x(s, buf): A(f"ds_read_b128 v[{XF+4*buf}:{XF+4*buf+3}], v{6+s}")
    def mf(ph, b, buf, first):
        w = f"v[{WF+16*buf+4*b}:{WF+16*buf+4*b+3}]"; x = f"v[{XF+4*buf}:{XF+4*buf+3}]"; a = f"v[{ACC+16*b}:{ACC+16*b+15}]"
        c = "0" if first else a
        if hack16:
            for h in range(2):
                r0 = ACC+16*b+8*buf+4*h
                xx = f"v[{XF+4*(buf^h)}:{XF+4*(buf^h)+3}]"
                A(f"v_mfma_f32_16x16x32_bf16 v[{r0}:{r0+3}], {w}, {xx}, v[{r0}:{r0+3}]")
            return
        A(f"v_mfma_f32_32x32x16_bf16 {a}, {w}, {x}, {c}" if ph == 1 else f"v_mfma_f32_32x32x16_bf16 {a}, {x}, {w}, {c}")
    retry = []
    nw = [0]
    def adv(): A(f"s_add_u32 s26, s26, 1\ns_cmp_eq_u32 s26, {S}\ns_cselect_b32 s26, 0, s26\ns_cselect_b32 s27, {-(S-1)*32768 & 0xffffffff}, s28\nv_add_u32 v12, 1, v12\nv_lshlrev_b32 v11, 2, s26")
    def sig(): A("ds_write_b32 v13, v12\nds_read_b32 v10, v11")
    def rdy():
        n = nw[0]; nw[0] += 1
        A(f"L_rc{n}:\ns_waitcnt lgkmcnt(0)\nv_cmp_le_u32 vcc, v10, v12\ns_cbranch_vccnz L_rw{n}\nL_rx{n}:")
        retry.append(f"L_rw{n}:\ns_sub_u32 s92, s92, 1\ns_cmp_lt_i32 s92, 0\ns_cbranch_scc1 L_rx{n}\nds_read_b32 v10, v11\ns_branch L_rc{n}")
    def tile(ph, first=False, extra=None, tail=None):
        extra = extra or {}
        for s in range(3):
            buf = s & 1
            for b in range(4):
                A(f"s_waitcnt lgkmcnt({6 if b == 0 else 7})")
                mf(ph, b, buf, first and s == 0)
                if b == 0: rd_x(s+1, buf ^ 1)
                rd_w(s+1, b, buf ^ 1)
                if (s, b) in extra: A(extra[(s, b)])
                if s == 2 and b == 0: adv()
        if tail == "last":
            for b in range(4): A(f"s_waitcnt lgkmcnt({6-2*b})"); mf(ph, b, 1, False)
            return
        sig()
        A("s_waitcnt lgkmcnt(8)"); mf(ph, 0, 1, False)
        for r in range(2, 6): A(f"v_add_u32 v{r}, s27, v{r}")
        A("s_waitcnt lgkmcnt(6)"); mf(ph, 1, 1, False)
        for r in range(6, 10): A(f"v_add_u32 v{r}, s27, v{r}")
        rdy()
        if tail == "k":
            mf(ph, 2, 1, False)
            for ks in range(8):
                A(f"v_xor_b32 v15, {ks*32}, v14\nds_read_b128 v[{OUT+4*ks}:{OUT+4*ks+3}], v15")
                if ks == 3: mf(ph, 3, 1, False)
            adv(); sig()
            for r in range(2, 10): A(f"v_add_u32 v{r}, s27, v{r}")
            return
        rd_x(0, 0); rd_w(0, 0, 0)
        mf(ph, 2, 1, False)
        rd_w(0, 1, 0); rd_w(0, 2, 0)
        mf(ph, 3, 1, False)
        rd_w(0, 3, 0)
    A("s_mov_b32 s28, 32768")
    A(f"v_and_b32 v15, 31, v0\nv_and_b32 v14, 15, v0\nv_lshrrev_b32 v10, 5, v0\nv_xor_b32 v14, v14, v10\nv_lshlrev_b32 v14, 4, v14\nv_lshl_add_u32 v14, v15, 8, v14")
    A(f"s_lshl_b32 s3, s16, 13\ns_add_u32 s3, s3, {RB}\nv_add_u32 v14, s3, v14\nv_mov_b32 v10, 0")
    stamp()
    rdy()
    stamp()
    rd_x(0, 0)
    for b in range(4): rd_w(0, b, 0)
    if split:
        A(f"s_mov_b32 s29, {split}\nL_p0:")
        tile(1)
        A("s_sub_u32 s29, s29, 1\ns_cmp_lg_u32 s29, 0\ns_cbranch_scc1 L_p0")
        stamp()
    def hb_rd(s, k, buf):
        W = WF + 16*buf; X = W + 8
        if k in (0, 2): A(f"ds_read_b128 v[{X+2*k}:{X+2*k+3}], v{6+s} offset:{2048*k}")
        else:
            b = k >> 1
            A(f"ds_read_b64_tr_b16 v[{W+4*b}:{W+4*b+1}], v{2+b} offset:{s*4096}\nds_read_b64_tr_b16 v[{W+4*b+2}:{W+4*b+3}], v{2+b} offset:{s*4096+1024}")
    def hb_mf(k, buf):
        W = WF + 16*buf + 4*(k >> 1); X = WF + 16*buf + 8 + 4*(k & 1); a = f"v[{ACC+16*k}:{ACC+16*k+15}]"
        A(f"v_mfma_f32_32x32x16_bf16 {a}, v[{W}:{W+3}], v[{X}:{X+3}], {a}")
    def tile_b():
        for s in range(3):
            for k in range(4):
                if k < 3: A("s_waitcnt lgkmcnt(3)")
                hb_mf(k, s & 1); hb_rd(s+1, k, (s & 1) ^ 1)
                if s == 2 and k == 0: adv()
        sig()
        A("s_waitcnt lgkmcnt(5)"); hb_mf(0, 1)
        for r in (2, 3, 6): A(f"v_add_u32 v{r}, s27, v{r}")
        A("s_waitcnt lgkmcnt(4)"); hb_mf(1, 1)
        for r in (7, 8, 9): A(f"v_add_u32 v{r}, s27, v{r}")
        rdy()
        hb_rd(0, 0, 0); hb_rd(0, 1, 0); hb_mf(2, 1); hb_rd(0, 2, 0); hb_rd(0, 3, 0); hb_mf(3, 1)
    def hc_w(s, c): return [f"ds_read_b64_tr_b16 v[{16+4*c}:{17+4*c}], v{2+c} offset:{s*8192}", f"ds_read_b64_tr_b16 v[{18+4*c}:{19+4*c}], v{2+c} offset:{s*8192+1024}"]
    def hc_x(s, i): return [f"ds_read_b128 v[{32+16*s+4*i}:{35+16*s+4*i}], v{6+2*s} offset:{2048*(i&1)}"]
    def tile_c():
        for s in range(2):
            n = s ^ 1
            gaps = {0: hc_w(s, 3), 1: hc_w(n, 0) + hc_x(n, 0), 2: hc_w(n, 1) + hc_x(n, 1) + hc_x(n, 2), 3: hc_w(n, 2) + hc_x(n, 3)}
            for c in range(4):
                if c == 0: A("s_waitcnt lgkmcnt(1)")
                if c == 3: A("s_waitcnt lgkmcnt(7)")
                for i in range(4):
                    if c == 0 and i == 3: A(f"s_waitcnt lgkmcnt({2 + 2*s})")
                    a = f"v[{ACC+16*c+4*i}:{ACC+16*c+4*i+3}]"
                    A(f"v_mfma_f32_16x16x32_bf16 {a}, v[{16+4*c}:{19+4*c}], v[{32+16*s+4*i}:{35+16*s+4*i}], {a}")
                    g = gaps[c]
                    if s == 1 and c == 1:
                        if i == 0: [A(f"v_add_u32 v{r}, s27, v{r}") for r in (5, 8)]
                        if i == 1: rdy(); A(g[0])
                        if i >= 2: A(g[i-1])
                    elif i < len(g): A(g[i])
                    if s == 0 and c == 0 and i == 2: adv()
                    if s == 1 and c == 0 and i == 1: sig()
                    if s == 1 and c == 0 and i >= 2: [A(f"v_add_u32 v{r}, s27, v{r}") for r in ((2, 6), (3, 4))[i-2]]
    A(f"s_mov_b32 s29, {15-split}\nL_p1:")
    [lambda: tile(1), tile_b, tile_c][hk]()
    A("s_sub_u32 s29, s29, 1\ns_cmp_lg_u32 s29, 0\ns_cbranch_scc1 L_p1")
    tile(1, tail="k")
    stamp()
    KF, SA, PP = 128, 160, 176
    for i in range(32): A(f"v_cvt_pk_bf16_f32 v{HELD+i}, v{ACC+2*i}, v{ACC+2*i+1}")
    A("s_waitcnt lgkmcnt(0)\ns_nop 0")
    for ks in range(8):
        A(f"v_mfma_f32_32x32x16_bf16 v[{SA}:{SA+15}], v[{KF+4*ks}:{KF+4*ks+3}], v[{HELD+4*ks}:{HELD+4*ks+3}], " + ("0" if ks == 0 else f"v[{SA}:{SA+15}]"))
    import struct
    c = struct.unpack("<I", struct.pack("<f", math.log2(math.e) / math.sqrt(128.0)))[0]
    A(f"s_mov_b32 s30, {c:#x}\ns_mov_b32 s3, s34\ns_nop 0")
    for r in range(16): A(f"v_mov_b32 v{OUT+r}, 0")
    A(f"v_max3_f32 v14, v{SA}, v{SA+1}, v{SA+2}")
    for r in range(3, 15, 2): A(f"v_max3_f32 v14, v14, v{SA+r}, v{SA+r+1}")
    A(f"v_max_f32 v14, v14, v{SA+15}\nv_mov_b32 v15, v14\ns_nop 1\nv_permlane32_swap_b32 v14, v15\ns_nop 1\nv_max_f32 v14, v14, v15\nv_mul_f32 v14, s30, v14")
    for r in range(16): A(f"v_fma_f32 v{SA+r}, v{SA+r}, s30, -v14")
    for r in range(16): A(f"v_exp_f32 v{SA+r}, v{SA+r}")
    A(f"s_nop 0\nv_add_f32 v14, v{SA}, v{SA+1}\nv_add_f32 v15, v{SA+2}, v{SA+3}")
    for r in range(4, 16, 2): A(f"v_add_f32 v14, v14, v{SA+r}\nv_add_f32 v15, v15, v{SA+r+1}")
    A("v_add_f32 v14, v14, v15\nv_mov_b32 v15, v14\ns_nop 1\nv_permlane32_swap_b32 v14, v15\ns_nop 1\nv_add_f32 v14, v14, v15\nv_rcp_f32 v14, v14\ns_nop 0")
    for r in range(16): A(f"v_mul_f32 v{SA+r}, v{SA+r}, v14")
    for i in range(8): A(f"v_cvt_pk_bf16_f32 v{PF+i}, v{SA+2*i}, v{SA+2*i+1}")
    A(f"buffer_store_dwordx4 v[{PF}:{PF+3}], v1, s[44:47], s3 offen sc1\nbuffer_store_dwordx4 v[{PF+4}:{PF+7}], v1, s[44:47], s3 offen offset:1024 sc1")
    rdy()
    rd_x(0, 0)
    for b in range(4): rd_w(0, b, 0)
    for r in range(16, 64): A(f"v_mov_b32 v{OUT+r}, 0")
    stamp()
    def cvt(b, half, slot): return "\n".join(f"v_cvt_pk_bf16_f32 v{HELD+32*slot+8*b+4*half+i}, v{ACC+16*b+8*half+2*i}, v{ACC+16*b+8*half+2*i+1}" for i in range(4))
    def pm(b, s, slot, pf=PF): A(f"v_mfma_f32_32x32x16_bf16 v[{OUT+16*b}:{OUT+16*b+15}], v[{HELD+32*slot+8*b+4*s}:{HELD+32*slot+8*b+4*s+3}], v[{pf+4*s}:{pf+4*s+3}], v[{OUT+16*b}:{OUT+16*b+15}]")
    def ld2(pf, so, fl, off=0): return f"buffer_load_dwordx4 v[{pf}:{pf+3}], v1, s[44:47], {so} offen offset:{off} {fl}\nbuffer_load_dwordx4 v[{pf+4}:{pf+7}], v1, s[44:47], {so} offen offset:{off+1024} {fl}"
    def pload(pf, so): return f"s_lshr_b32 s101, s101, 4\ns_and_b32 {so}, s101, 7\ns_xor_b32 {so}, {so}, s20\ns_lshl_b32 {so}, {so}, 15\ns_add_u32 {so}, {so}, s24\n" + ld2(pf, so, psc)
    def mx(regs):
        r = [f"v_max3_u32 v10, v{regs[0]}, v{regs[1]}, v{regs[2]}"]
        for i in range(3, len(regs) - 1, 2): r.append(f"v_max3_u32 v10, v10, v{regs[i]}, v{regs[i+1]}")
        r.append(f"v_max_u32 v10, v10, v{regs[-1]}\nv_cmp_eq_u32 vcc, -1, v10")
        return "\n".join(r)
    def chk(name, lst):
        regs = [p+i for p, _, _ in lst for i in range(8)]
        retry.append(f"L_rt{name}:\ns_sub_u32 s33, s33, 1\ns_cmp_lt_i32 s33, 0\ns_cbranch_scc1 L_ok{name}\n" + "\n".join(ld2(p, so, "sc1", off) for p, so, off in lst) + f"\ns_branch L_ck{name}")
        return f"L_ck{name}:\ns_waitcnt vmcnt(0)\n" + mx(regs) + f"\ns_cbranch_vccnz L_rt{name}\nL_ok{name}:"
    def cvtpm():
        A(cvt(0, 0, 0)); A(cvt(0, 1, 0))
        for b in range(3):
            pm(b, 0, 0); A(cvt(b+1, 0, 0)); pm(b, 1, 0); A(cvt(b+1, 1, 0))
        pm(3, 0, 0); A("s_nop 1"); pm(3, 1, 0)
    A("s_mov_b32 s33, 0x40000")
    tile(2, first=True); tile(2); cvtpm()
    tile(2, first=True); tile(2)
    for b in range(4):
        if b == 2: A("s_nop 7")
        A(cvt(b, 0, 1)); A(cvt(b, 1, 1))
    stamp()
    P1 = HELD + 24
    tile(2, first=True, extra={(0, 1): pload(P1, "s4") + "\n" + pload(PF, "s5")})
    tile(2, extra={(2, 1): chk("a", [(P1, "s4", 0), (PF, "s5", 0)])})
    for b in range(4): pm(b, 0, 1, P1); pm(b, 1, 1, P1)
    cvtpm()
    stamp()
    A("s_mov_b32 s29, 4\nL_p2:")
    tile(2, first=True, extra={(0, 1): pload(PF, "s5")})
    tile(2, extra={(2, 1): chk("b", [(PF, "s5", 0)])})
    cvtpm()
    A("s_sub_u32 s29, s29, 1\ns_cmp_lg_u32 s29, 0\ns_cbranch_scc1 L_p2")
    tile(2, first=True, extra={(0, 1): pload(PF, "s5")})
    tile(2, extra={(2, 1): chk("d", [(PF, "s5", 0)])}, tail="last")
    cvtpm()
    stamp()
    A("s_lshl_b32 s4, s18, 18\ns_sub_u32 s5, s34, s4\ns_add_u32 s6, s34, 2048\ns_add_u32 s7, s34, 6144")
    for b in range(4):
        A(f"s_cmp_eq_u32 s18, {b}\ns_cbranch_scc1 L_own{b}")
        A(f"s_sub_u32 s3, s18, {b}\ns_and_b32 s3, s3, 3\ns_lshl_b32 s3, s3, 11\ns_add_u32 s3, s3, s5")
        for i in range(8): A(f"v_cvt_pk_bf16_f32 v{HELD+8*b+i}, v{OUT+16*b+2*i}, v{OUT+16*b+2*i+1}")
        for i in range(2): A(f"buffer_store_dwordx4 v[{HELD+8*b+4*i}:{HELD+8*b+4*i+3}], v1, s[44:47], s3 offen offset:{1024*i} sc1")
        A(f"s_branch L_nxt{b}\nL_own{b}:")
        for r in range(16): A(f"v_mov_b32 v{ACC+r}, v{OUT+16*b+r}")
        A(f"L_nxt{b}:\ns_add_u32 s5, s5, {1<<18}")
    IN = ACC + 16
    lst = [(IN, "s6", 0), (IN+8, "s6", 2048), (IN+16, "s7", 0)]
    for p, so, off in lst: A(ld2(p, so, "sc1", off))
    A("v_and_b32 v11, 31, v0\nv_lshrrev_b32 v12, 5, v0\nv_lshlrev_b32 v12, 4, v12\nv_lshl_add_u32 v12, v11, 12, v12\ns_mov_b32 s30, 0xffff0000")
    A("s_lshl_b32 s3, s23, 17\ns_lshl_b32 s4, s17, 11\ns_add_u32 s3, s3, s4\ns_lshl_b32 s4, s20, 8\ns_add_u32 s3, s3, s4\ns_lshl_b32 s4, s18, 6\ns_add_u32 s3, s3, s4")
    stamp()
    A(chk("c", lst))
    stamp()
    A("s_waitcnt lgkmcnt(0)")
    for i in range(24): A(f"v_lshlrev_b32 v{OUT+i}, 16, v{IN+i}\nv_and_b32 v{IN+i}, s30, v{IN+i}")
    for k in range(3):
        for i in range(8): A(f"v_add_f32 v{ACC+2*i}, v{ACC+2*i}, v{OUT+8*k+i}\nv_add_f32 v{ACC+2*i+1}, v{ACC+2*i+1}, v{IN+8*k+i}")
    for i in range(8): A(f"v_cvt_pk_bf16_f32 v{WF+i}, v{ACC+2*i}, v{ACC+2*i+1}")
    A(f"buffer_store_dwordx4 v[{WF}:{WF+3}], v12, s[12:15], s3 offen {osc}\nbuffer_store_dwordx4 v[{WF+4}:{WF+7}], v12, s[12:15], s3 offen offset:32 {osc}")
    if stamps or probe is not None: A("s_waitcnt vmcnt(0)")
    stamp()
    stamp_store(0)
    if probe is not None:
        if pwg >= 0: A(f"s_cmp_lg_u32 s2, {pwg}\ns_cbranch_scc1 L_end")
        if probe == -1: A("s_mov_b32 s62, s90")
        A("s_add_u32 s62, s62, 5000\nL_spin:\ns_sleep 4\ns_memrealtime s[64:65]\ns_waitcnt lgkmcnt(0)\ns_sub_u32 s64, s64, s62\ns_cmp_lt_i32 s64, 0\ns_cbranch_scc1 L_spin")
    A("L_end:\ns_endpgm")
    for r in retry: A(r)
    o.append(f'''.section .rodata,"a"
.p2align 6
.amdhsa_kernel {NAME}_kernel
  .amdhsa_next_free_vgpr 256
  .amdhsa_next_free_sgpr 102
  .amdhsa_accum_offset 256
  .amdhsa_group_segment_fixed_size 0
  .amdhsa_kernarg_size 104
  .amdhsa_user_sgpr_count 2
  .amdhsa_user_sgpr_kernarg_segment_ptr 1
  .amdhsa_system_sgpr_workgroup_id_x 1
.end_amdhsa_kernel''')
    return "\n".join(o) + "\n"

if __name__ == "__main__":
    kw = {}
    out = sys.argv[1]
    for a in sys.argv[2:]:
        k, v = a.split("=")
        kw[k] = int(v) if v.lstrip("-").isdigit() else v.replace('+', ' ')
    open(out, "w").write(gen(**kw))
```

```python
import sys, math
NAME = "concat_heads__gqa_block_cached__mha_block_cached__near_ridge"
HDR = open("cdna_kernels/%s.s.ref" % NAME).read().split("; @launch")[0]

def gen(D=1, tok=3, split=0, allhit=0, hk=0, D2=0, swp=0, PD=1, p1=3, pc=5, fo=1, po=0, o2='sc1', nofl=13, tok2=3, slc=-1, sl=1, prl=0, prc=0, ntw="", ntx="", ntk="", ntv="", stamps=False, g1=4, g2=1, fi=0, ki=-1, vi=-1, fsc="sc1", psc="", noload=0, nocomp=0, tl=0, hack16=0, osc="", probe=None, pwg=-1):
    o = []
    role = [0]
    def A(s):
        for l in s.split("\n"):
            if noload and "offen" in l and l.strip().endswith("lds"): continue
            if nocomp & 1 and l.strip().startswith("v_mfma"): continue
            if nocomp & 2 and l.strip().startswith("ds_read") and "ds_read_b32" not in l: continue
            o.append("    " + l.strip() if not l.strip().endswith(":") else l.strip())
    S = 4; RB = 2048
    STG = RB + S * 32768; LDS = STG + 16384
    STAMP = 1 << 26
    nst = [0]
    def stamp():
        if probe is not None and role[0] == 0:
            if nst[0] == 0: A("s_memrealtime s[60:61]\ns_waitcnt lgkmcnt(0)\ns_mov_b32 s62, s60")
            elif nst[0] == probe: A("s_memrealtime s[62:63]\ns_waitcnt lgkmcnt(0)")
            nst[0] += 1
        if stamps:
            if nst[0] == 0: A("s_memtime s[96:97]")
            A(f"s_memrealtime s[{60+2*nst[0]}:{61+2*nst[0]}]\ns_memtime s[98:99]\ns_waitcnt lgkmcnt(0)")
            nst[0] += 1
    def stamp_store(role):
        if stamps:
            A(f"s_lshl_b32 s3, s2, 10\ns_lshl_b32 s4, s16, 7\ns_add_u32 s3, s3, s4\ns_add_u32 s3, s3, {STAMP}\nv_mov_b32 v1, 0")
            for i in range(nst[0]):
                A(f"v_mov_b32 v2, s{60+2*i}\nbuffer_store_dword v2, v1, s[44:47], s3 offen offset:{4*i}")
            A(f"s_sub_u32 s98, s98, s96\nv_mov_b32 v2, s98\nbuffer_store_dword v2, v1, s[44:47], s3 offen offset:120\nv_mov_b32 v2, {nst[0]}\nbuffer_store_dword v2, v1, s[44:47], s3 offen offset:124")
            A("v_mov_b32 v2, s90\nbuffer_store_dword v2, v1, s[44:47], s3 offen offset:116\ns_waitcnt vmcnt(0)")
    o.append(HDR + f"; @launch grid=(256,1,1) block=(512,1,1) lds={LDS}")
    o.append(f'.amdgcn_target "amdgcn-amd-amdhsa--gfx950"\n.text\n.globl {NAME}_kernel\n.p2align 8\n.type {NAME}_kernel,@function\n{NAME}_kernel:')
    if stamps or probe == -1: A("s_memrealtime s[90:91]")
    A("s_cmp_ge_u32 s2, 256\ns_cbranch_scc1 L_end")
    A("s_bfe_u32 s17, s2, 0x10002\ns_and_b32 s18, s2, 3\ns_lshr_b32 s19, s2, 6\ns_bfe_u32 s20, s2, 0x30003")
    A("s_mul_i32 s3, s17, 40\ns_add_u32 s4, s0, s3\ns_addc_u32 s5, s1, 0")
    A("s_load_dwordx8 s[24:31], s[4:5], 0\ns_load_dwordx2 s[32:33], s[4:5], 32\ns_load_dwordx4 s[36:39], s[0:1], 80\ns_load_dwordx2 s[44:45], s[0:1], 96")
    A("v_lshrrev_b32 v1, 6, v0\nv_and_b32 v0, 63, v0\nv_readfirstlane_b32 s16, v1")
    A("s_lshl_b32 s21, s17, 2\ns_add_u32 s21, s21, s19\ns_lshl_b32 s21, s21, 5")
    A("s_mov_b32 s92, 0x1000000\ns_mov_b32 s46, 0x10000000\ns_mov_b32 s47, 0x20000")
    def order2(r):
        seq = [0]
        for p in range(1, 8):
            seq.append(p + D2 if D2 and (p + D2) % 4 == r and p + D2 < 8 and p + D2 not in seq else min(x for x in range(8) if x not in seq))
        return seq
    for r in range(4):
        v = sum(t << (4*p) for p, t in enumerate(order2(r)))
        A(f"s_mov_b32 s101, {v:#x}" if r == 0 else f"s_cmp_eq_u32 s19, {r}\ns_cselect_b32 s101, {v:#x}, s101")
    A("v_lshlrev_b32 v13, 2, v0\nv_mov_b32 v12, 0\ns_cmp_ge_u32 s16, 4\ns_cbranch_scc0 L_compute")
    role[0] = 1
    if prl: A(f"s_setprio {prl}")
    A("s_and_b32 s22, s16, 3")
    A("v_cmp_eq_u32 vcc, 4, v0\nv_cndmask_b32 v12, v12, -3, vcc\nds_write_b32 v13, v12")
    A("s_lshl_b32 s23, s19, 2")
    A("s_lshl_b32 s34, s18, 3\ns_add_u32 s34, s34, s20")
    A("v_lshrrev_b32 v1, 3, v0\nv_lshrrev_b32 v2, 4, v0\nv_and_b32 v3, 7, v0\nv_xor_b32 v3, v3, v2\nv_lshlrev_b32 v3, 4, v3")
    A("v_xor_b32 v4, 64, v3")
    A("v_and_b32 v5, 15, v0\nv_lshlrev_b32 v6, 2, v2\nv_xor_b32 v6, v5, v6\nv_lshlrev_b32 v6, 4, v6")
    A("s_lshl_b32 s3, s23, 16")
    A("v_lshl_add_u32 v7, v1, 11, s3")
    for jj in range(4): A(f"v_add_u32 v{8+jj}, {jj*(16384-1024)}, v7\nv_add_u32 v{8+jj}, v{8+jj}, v{3+(jj&1)}")
    A("s_lshl_b32 s3, s34, 8\nv_lshl_add_u32 v7, v2, 13, s3\nv_add_u32 v7, v7, v6")
    for jj in range(4): A(f"v_add_u32 v{12+jj}, {jj*(32768-1024)}, v7")
    A("s_cmp_eq_u32 s17, 0\ns_cselect_b32 s35, 0, 8192\ns_cselect_b32 s14, 19, 22\ns_cselect_b32 s58, 15, 18\ns_cselect_b32 s59, 13, 16")
    A("s_lshl_b32 s89, 1, s58\ns_lshl_b32 s58, s23, s58\ns_lshl_b32 s59, s18, s59\ns_add_u32 s58, s58, s59")
    A("s_lshl_b32 s3, s18, 21\ns_lshl_b32 s59, s20, 8\ns_add_u32 s3, s3, s59\nv_lshl_add_u32 v7, v2, 11, s3\nv_add_u32 v7, v7, v6")
    for jj in range(4): A(f"v_add_u32 v{20+jj}, {jj*(8192-1024)}, v7")
    A("s_mul_i32 s59, s20, s35\ns_add_u32 s58, s58, s59\nv_lshl_add_u32 v7, v2, 8, s58\nv_lshl_add_u32 v5, v1, 8, s58")
    for jj in range(4): A(f"v_add_u32 v{24+jj}, {jj*1024}, v5\nv_add_u32 v{24+jj}, v{24+jj}, v{3+(jj&1)}")
    A("v_add_u32 v16, v7, v6")
    A("v_lshl_add_u32 v28, v0, 7, s58")
    def order(r):
        if allhit: return [0]*16
        if D < 0: return [p ^ (r & (g1-1)) for p in range(16)]
        seq = []
        for p in range(16):
            t = p + D if (p + D) % 4 == r and p + D < 16 and p + D not in seq else min(x for x in range(16) if x not in seq)
            seq.append(t)
        return seq
    A("s_add_u32 s3, s19, s20\ns_and_b32 s3, s3, 3")
    for r in range(4):
        v = sum(t << (4*p) for p, t in enumerate(order(r)))
        if r == 0: A(f"s_mov_b32 s40, {v & 0xffffffff:#x}\ns_mov_b32 s41, {v >> 32:#x}")
        else: A(f"s_cmp_eq_u32 s3, {r}\ns_cselect_b32 s40, {v & 0xffffffff:#x}, s40\ns_cselect_b32 s41, {v >> 32:#x}, s41")
    A(f"s_sub_u32 s3, s3, {max(D,0)}\ns_and_b32 s3, s3, {3 if D >= 0 else 0}\ns_add_u32 s100, s3, {fo}\ns_and_b32 s100, s100, 3\ns_cmp_eq_u32 s100, s22\ns_cselect_b32 s100, 0, 99\ns_add_u32 s56, s3, {po}\ns_and_b32 s56, s56, 3\ns_cmp_eq_u32 s56, s22\ns_cselect_b32 s56, 0, 99")
    A("s_lshl_b32 s3, s22, 2\ns_lshr_b64 s[40:41], s[40:41], s3")
    A(f"s_lshl_b32 s57, s22, 15\ns_add_u32 s57, s57, {RB}")
    A("v_and_b32 v30, 3, v0\nv_lshlrev_b32 v30, 8, v30\nv_add_u32 v30, 256, v30\nv_cmp_lt_u32 vcc, 3, v0\nv_cndmask_b32 v30, v30, 16, vcc\nv_mov_b32 v31, s3\nv_mov_b32 v33, 16")
    A("s_waitcnt lgkmcnt(0)\ns_barrier\ns_mov_b32 s88, s29\ns_sub_u32 s29, s22, 3")
    A("s_mov_b32 s4, s24\ns_and_b32 s5, s25, 0xffff\ns_mov_b32 s6, 0x100000\ns_mov_b32 s7, 0x20000")
    A("s_mov_b32 s8, s30\ns_and_b32 s9, s31, 0xffff\ns_mov_b32 s10, 0x800000\ns_mov_b32 s11, 0x20000")
    A("s_lshl_b32 s14, 1, s14\ns_mov_b32 s12, s26\ns_and_b32 s13, s27, 0xffff\ns_mov_b32 s15, 0x20000")
    A("s_mov_b32 s48, s28\ns_and_b32 s49, s88, 0xffff\ns_mov_b32 s50, s14\ns_mov_b32 s51, 0x20000")
    A("s_mov_b32 s52, s32\ns_and_b32 s53, s33, 0xffff\ns_mov_b32 s54, 0x800000\ns_mov_b32 s55, 0x20000")
    nl = [0]
    def tls(i):
        if tl: A(f"s_memrealtime s[94:95]\ns_add_u32 s93, s29, 3\ns_lshr_b32 s93, s93, 2\ns_lshl_b32 s93, s93, 1\ns_add_u32 m0, s93, {i}\ns_waitcnt lgkmcnt(0)\nv_writelane_b32 v34, s94, m0")
    def pre():
        n = nl[0]; nl[0] += 1
        A(f"s_branch L_pe{n}\nL_pw{n}:\ns_sub_u32 s92, s92, 1\ns_cmp_lt_i32 s92, 0\ns_cbranch_scc1 L_px{n}\ns_sleep {sl}\nL_pe{n}:\nds_read_b32 v32, v30\ns_waitcnt lgkmcnt(0)\nv_cmp_gt_i32 vcc, s29, v32\ns_cbranch_vccnz L_pw{n}\nL_px{n}:")
        tls(0)
    def issue(srd, vb, so, step, fl, g0, x=0, vs=1, n=4, tok=tok, mb=None):
        for g in range(g0, g0 + n):
            A(f"s_add_u32 m0, s57, {(g^x)*4096}" if mb is None else f"s_mov_b32 m0, {mb+g*4096}")
            if g > g0: A(f"s_add_u32 {so}, {so}, {step[(g-g0-1) % len(step)]}")
            else: A("s_nop 0")
            for jj in range(4): A(f"buffer_load_dwordx4 v{vb+jj*vs}, {srd}, {so} offen offset:{jj*1024} {fl} lds")
            if g + 1 == tok: A("s_add_u32 s3, s29, 1\nv_mov_b32 v32, s3\nds_write_b32 v33, v32")
    def post(mid=None):
        A("s_add_u32 s3, s29, 4\nv_mov_b32 v35, s3\ns_waitcnt vmcnt(0)")
        if mid: A(mid)
        A("ds_write_b32 v31, v35")
        tls(1)
        A("s_add_u32 s29, s29, 4")
    stamp()
    A("L_l1:")
    pre()
    def fills(g0, n):
        A(f"s_add_u32 s3, s21, s34\ns_lshl_b32 s3, s3, 16\ns_add_u32 s3, s3, {g0*4096}\nv_lshlrev_b32 v36, 4, v0\ns_and_b32 s45, s45, 0xffff")
        for r in range(4): A(f"v_mov_b32 v{40+r}, -1")
        for g in range(n):
            for jj in range(4): A(f"buffer_store_dwordx4 v[40:43], v36, s[44:47], s3 offen offset:{jj*1024} {fsc}")
            if g < n - 1: A("s_add_u32 s3, s3, 4096")
    def touch(srd):
        A("s_mov_b32 s3, 0")
        for g in range(4): A(f"buffer_load_dword v29, v28, {srd}, s3 offen\ns_add_u32 s3, s3, s89")
    for it in range(1, 4):
        if it in (2, ki, vi):
            A(f"s_cmp_lg_u32 s100, {it}\ns_cbranch_scc1 L_x{it}")
            if it == 2: A("s_add_u32 s3, s21, s34\nv_mov_b32 v36, s3\nv_mov_b32 v37, 1\ns_mov_b64 exec, 1\ns_waitcnt vmcnt(0)\nglobal_store_byte v36, v37, s[38:39] sc1\ns_mov_b64 exec, -1")
            if it == ki: touch("s[12:15]")
            if it == vi: touch("s[48:51]")
            A(f"L_x{it}:")
    A("s_and_b32 s3, s40, 15\ns_lshr_b64 s[40:41], s[40:41], 16\ns_lshl_b32 s42, s3, 19\ns_lshl_b32 s43, s3, 7")
    issue("s[8:11]", 12, "s42", [1 << 17], ntw, 0)
    issue("s[4:7]", 8, "s43", [1 << 16], ntx, 4)
    A("s_cmp_gt_u32 s56, 3\ns_cbranch_scc1 L_np\ns_and_b32 s3, s56, 1\ns_cmp_gt_u32 s56, 1\ns_cbranch_scc1 L_pv\ns_lshl_b32 s42, s3, 7")
    issue("s[12:15]", 24, "s42", ["s89"], ntk, 0, tok=-1, mb=STG)
    A("s_branch L_pd\nL_pv:\ns_lshl_b32 s42, s3, 12")
    issue("s[48:51]", 16, "s42", ["s89"], ntv, 0, vs=0, tok=-1, mb=STG)
    A("L_pd:\ns_add_u32 s56, s56, 1\nL_np:\ns_add_u32 s100, s100, 1")
    for it, (g0, n) in enumerate(((0, 8), (8, 6))):
        A(f"s_cmp_lg_u32 s100, {it+1}\ns_cbranch_scc1 L_ns{it}")
        fills(g0, n)
        A(f"s_add_u32 s3, s29, 4\nv_mov_b32 v35, s3\ns_waitcnt vmcnt({4*n})\ns_branch L_nw\nL_ns{it}:")
    A("L_ns:")
    post("L_nw:")
    A("s_cmp_lt_i32 s29, 13\ns_cbranch_scc1 L_l1")
    stamp()
    A("L_l2:")
    pre()
    A("s_cmp_lg_u32 s29, 13\ns_cbranch_scc1 L_nfl\ns_load_dwordx8 s[80:87], s[38:39], s21 glc\nL_nfl:\ns_sub_u32 s3, s29, 13\ns_lshl_b32 s3, s3, 2\ns_lshr_b32 s42, s101, s3\ns_and_b32 s42, s42, 7\ns_xor_b32 s42, s42, s20\ns_lshl_b32 s42, s42, 18")
    issue("s[52:55]", 20, "s42", [1 << 15], ntw, 0, n=8, tok=tok2)
    post(f"s_cmp_eq_u32 s29, {nofl}\ns_cbranch_scc1 L_fchk\nL_fok:")
    A("s_cmp_lt_i32 s29, 21\ns_cbranch_scc1 L_l2")
    A("L_lend:")
    stamp()
    if stamps: A("s_and_b32 s45, s45, 0xffff")
    stamp_store(1)
    if tl: A(f"s_lshl_b32 s3, s2, 2\ns_add_u32 s3, s3, s22\ns_lshl_b32 s3, s3, 8\ns_add_u32 s3, s3, {STAMP + (1<<20)}\nv_lshlrev_b32 v1, 2, v0\nbuffer_store_dword v34, v1, s[44:47], s3 offen\ns_waitcnt vmcnt(0)")
    role[0] = 0
    A("s_endpgm")
    A("L_fchk:\ns_waitcnt lgkmcnt(0)")
    for i in range(0, 8, 4): A(f"s_and_b64 s[{80+i}:{81+i}], s[{80+i}:{81+i}], s[{82+i}:{83+i}]")
    A("s_and_b64 s[80:81], s[80:81], s[84:85]\ns_and_b32 s80, s80, s81\ns_cmp_eq_u32 s80, 0x01010101\ns_cbranch_scc1 L_fok")
    A("v_and_b32 v1, 7, v0\nv_lshl_add_u32 v1, v1, 2, s21\ns_mov_b32 s33, 0x40000\ns_mov_b32 s80, 0x01010101\nL_fp1:\nglobal_load_dword v2, v1, s[38:39] sc1\ns_waitcnt vmcnt(0)")
    A("v_cmp_ne_u32 vcc, s80, v2\ns_cbranch_vccz L_fok\ns_sub_u32 s33, s33, 1\ns_cbranch_scc1 L_fok\ns_sleep 8\ns_branch L_fp1")
    nst[0] = 0
    A("L_compute:")
    if prc: A(f"s_setprio {prc}")
    A("s_lshl_b32 s3, s16, 8\ns_add_u32 s3, s3, 256\nv_add_u32 v16, s3, v13\nds_write_b32 v16, v12")
    ACC, OUT, HELD, WF, XF, PF = 64, 128, 192, 16, 48, 56
    A("v_lshrrev_b32 v10, 5, v0\nv_bfe_u32 v11, v0, 2, 2\nv_bfe_u32 v12, v0, 4, 1\nv_and_b32 v13, 1, v0\nv_bfe_u32 v14, v0, 1, 1")
    A("v_lshl_add_u32 v15, v10, 3, v11\nv_lshlrev_b32 v15, 8, v15\nv_lshl_add_u32 v15, v11, 6, v15\nv_lshl_add_u32 v15, v12, 5, v15\nv_lshl_add_u32 v15, v13, 4, v15\nv_lshl_add_u32 v2, v14, 3, v15")
    A(f"v_add_u32 v2, {RB}, v2")
    for b in range(1, 4): A(f"v_xor_b32 v{2+b}, {b*64}, v2")
    A("v_and_b32 v11, 31, v0\nv_bfe_u32 v12, v0, 1, 3\nv_xor_b32 v12, v12, v10\nv_lshlrev_b32 v12, 4, v12\nv_lshl_add_u32 v12, v11, 7, v12")
    A(f"s_lshl_b32 s3, s16, 12\ns_add_u32 s3, s3, {16384+RB}\nv_add_u32 v6, s3, v12")
    for s in range(1, 4): A(f"v_xor_b32 v{6+s}, {s*32}, v6")
    A("v_lshlrev_b32 v1, 4, v0")
    for r in range(64): A(f"v_mov_b32 v{ACC+r}, 0")
    A("s_lshl_b32 s23, s19, 2\ns_add_u32 s23, s23, s16")
    A("s_waitcnt lgkmcnt(0)\ns_barrier")
    A("s_lshl_b32 s25, s18, 3\ns_add_u32 s25, s25, s21\ns_lshl_b32 s24, s25, 16\ns_lshl_b32 s3, s16, 13\ns_add_u32 s24, s24, s3\ns_add_u32 s25, s25, s20")
    A("s_lshl_b32 s34, s20, 16\ns_add_u32 s34, s34, s24")
    A("v_mov_b32 v13, v16\nv_mov_b32 v12, 0\nv_mov_b32 v11, 0")
    A("s_and_b32 s45, s45, 0xffff")
    A("s_mov_b32 s12, s36\ns_and_b32 s13, s37, 0xffff\ns_mov_b32 s14, 0x200000\ns_mov_b32 s15, 0x20000")
    A("s_mov_b32 s26, 0")
    def rd_w(s, b, buf):
        A(f"ds_read_b64_tr_b16 v[{WF+16*buf+4*b}:{WF+16*buf+4*b+1}], v{2+b} offset:{s*4096}")
        A(f"ds_read_b64_tr_b16 v[{WF+16*buf+4*b+2}:{WF+16*buf+4*b+3}], v{2+b} offset:{s*4096+1024}")
    def rd_x(s, buf): A(f"ds_read_b128 v[{XF+4*buf}:{XF+4*buf+3}], v{6+s}")
    def mf(ph, b, buf, first):
        w = f"v[{WF+16*buf+4*b}:{WF+16*buf+4*b+3}]"; x = f"v[{XF+4*buf}:{XF+4*buf+3}]"; a = f"v[{ACC+16*b}:{ACC+16*b+15}]"
        c = "0" if first else a
        if hack16:
            for h in range(2):
                r0 = ACC+16*b+8*buf+4*h
                xx = f"v[{XF+4*(buf^h)}:{XF+4*(buf^h)+3}]"
                A(f"v_mfma_f32_16x16x32_bf16 v[{r0}:{r0+3}], {w}, {xx}, v[{r0}:{r0+3}]")
            return
        A(f"v_mfma_f32_32x32x16_bf16 {a}, {w}, {x}, {c}" if ph == 1 else f"v_mfma_f32_32x32x16_bf16 {a}, {x}, {w}, {c}")
    retry = []
    nw = [0]
    def adv(): A(f"s_add_u32 s26, s26, 1\ns_cmp_eq_u32 s26, {S}\ns_cselect_b32 s26, 0, s26\ns_cselect_b32 s27, {-(S-1)*32768 & 0xffffffff}, s28\nv_add_u32 v12, 1, v12\nv_lshlrev_b32 v11, 2, s26")
    def sig(): A("ds_write_b32 v13, v12\nds_read_b32 v10, v11")
    def rdy():
        n = nw[0]; nw[0] += 1
        A(f"L_rc{n}:\ns_waitcnt lgkmcnt(0)\nv_cmp_le_u32 vcc, v10, v12\ns_cbranch_vccnz L_rw{n}\nL_rx{n}:")
        retry.append(f"L_rw{n}:\ns_sub_u32 s92, s92, 1\ns_cmp_lt_i32 s92, 0\ns_cbranch_scc1 L_rx{n}\n{'' if slc < 0 else 's_sleep %d' % slc}\nds_read_b32 v10, v11\ns_branch L_rc{n}")
    def tile(ph, first=False, extra=None, tail=None):
        extra = extra or {}
        for s in range(3):
            buf = s & 1
            for b in range(4):
                A(f"s_waitcnt lgkmcnt({6 if b == 0 else 7})")
                mf(ph, b, buf, first and s == 0)
                if b == 0: rd_x(s+1, buf ^ 1)
                rd_w(s+1, b, buf ^ 1)
                if (s, b) in extra: A(extra[(s, b)])
                if s == 2 and b == 0: adv()
        if tail == "last":
            for b in range(4): A(f"s_waitcnt lgkmcnt({6-2*b})"); mf(ph, b, 1, False)
            return
        sig()
        A("s_waitcnt lgkmcnt(8)"); mf(ph, 0, 1, False)
        for r in range(2, 6): A(f"v_add_u32 v{r}, s27, v{r}")
        A("s_waitcnt lgkmcnt(6)"); mf(ph, 1, 1, False)
        for r in range(6, 10): A(f"v_add_u32 v{r}, s27, v{r}")
        if tail == "k":
            for b in (2, 3): A(f"s_waitcnt lgkmcnt({8-2*b})"); mf(ph, b, 1, False)
            return
        rdy()
        rd_x(0, 0); rd_w(0, 0, 0)
        mf(ph, 2, 1, False)
        rd_w(0, 1, 0); rd_w(0, 2, 0)
        mf(ph, 3, 1, False)
        rd_w(0, 3, 0)
    A("s_mov_b32 s28, 32768")
    KF, SA, VF = 128, 160, 224
    A(f"s_lshl_b32 s3, s16, 12\ns_add_u32 s3, s3, {STG-RB}\nv_lshrrev_b32 v15, 5, v0\nv_lshlrev_b32 v15, 10, v15\nv_sub_u32 v15, s3, v15\nv_mov_b32 v10, 0")
    for k in range(4): A(f"v_add_u32 v{PF+k}, {STG-RB-16384}, v{6+k}\nv_add_u32 v{PF+4+k}, v{2+k}, v15")
    A(f"s_add_u32 s35, s19, s20\ns_add_u32 s35, s35, {po-D+4}\ns_and_b32 s35, s35, 3\ns_mov_b32 s31, 0")
    def piece(n, ks):
        r = f"L_pc{n}:\ns_waitcnt lgkmcnt(4)\ns_add_u32 s31, s31, 1\n"
        for k in ks:
            if k < 3: r += f"s_cmp_lg_u32 s31, {k+1}\ns_cbranch_scc1 L_pc{n}{k}\n"
            if k < 2: r += "".join(f"ds_read_b128 v[{KF+16*k+4*s}:{KF+16*k+4*s+3}], v{PF+s}\n" for s in range(4))
            else: r += "".join(f"ds_read_b64_tr_b16 v[{VF+8*b+4*(k-2)+2*h}:{VF+8*b+4*(k-2)+2*h+1}], v{PF+4+b} offset:{h*2048}\n" for b in range(4) for h in range(2))
            r += f"s_branch L_pr{n}\nL_pc{n}{k}:\n" if k < 3 else f"s_branch L_pr{n}"
        retry.append(r)
        return {(0, 1): f"s_cmp_eq_u32 s26, s35\ns_cbranch_scc1 L_pc{n}\nL_pr{n}:"}
    stamp()
    rdy()
    stamp()
    rd_x(0, 0)
    for b in range(4): rd_w(0, b, 0)
    if split:
        A(f"s_mov_b32 s29, {split}\nL_p0:")
        tile(1)
        A("s_sub_u32 s29, s29, 1\ns_cmp_lg_u32 s29, 0\ns_cbranch_scc1 L_p0")
        stamp()
    A(f"s_mov_b32 s29, {15-split}\nL_p1:")
    tile(1, extra=piece("a", range(4)))
    A("s_sub_u32 s29, s29, 1\ns_cmp_lg_u32 s29, 0\ns_cbranch_scc1 L_p1")
    tile(1, tail="k", extra=piece("b", [3]))
    stamp()
    OB = [128, 160, 192, 224]
    for i in range(16): A(f"v_cvt_pk_bf16_f32 v{HELD+i}, v{ACC+2*i}, v{ACC+2*i+1}")
    for ks in range(8):
        A(f"v_mfma_f32_32x32x16_bf16 v[{SA}:{SA+15}], v[{KF+4*ks}:{KF+4*ks+3}], v[{HELD+4*ks}:{HELD+4*ks+3}], " + ("0" if ks == 0 else f"v[{SA}:{SA+15}]"))
        if ks < 4:
            for i in range(16+4*ks, 20+4*ks): A(f"v_cvt_pk_bf16_f32 v{HELD+i}, v{ACC+2*i}, v{ACC+2*i+1}")
    import struct
    c = struct.unpack("<I", struct.pack("<f", math.log2(math.e) / math.sqrt(128.0)))[0]
    A(f"s_mov_b32 s30, {c:#x}\ns_add_u32 s3, s34, 4096\ns_nop 9")
    A(f"v_max3_f32 v14, v{SA}, v{SA+1}, v{SA+2}")
    for r in range(3, 15, 2): A(f"v_max3_f32 v14, v14, v{SA+r}, v{SA+r+1}")
    A(f"v_max_f32 v14, v14, v{SA+15}\nv_mov_b32 v15, v14\ns_nop 1\nv_permlane32_swap_b32 v14, v15\ns_nop 1\nv_max_f32 v14, v14, v15\nv_mul_f32 v14, s30, v14")
    for r in range(16): A(f"v_fma_f32 v{SA+r}, v{SA+r}, s30, -v14")
    for r in range(16): A(f"v_exp_f32 v{SA+r}, v{SA+r}")
    A(f"s_nop 0\nv_add_f32 v14, v{SA}, v{SA+1}\nv_add_f32 v15, v{SA+2}, v{SA+3}")
    for r in range(4, 16, 2): A(f"v_add_f32 v14, v14, v{SA+r}\nv_add_f32 v15, v15, v{SA+r+1}")
    A("v_add_f32 v14, v14, v15\nv_mov_b32 v15, v14\ns_nop 1\nv_permlane32_swap_b32 v14, v15\ns_nop 1\nv_add_f32 v14, v14, v15\nv_rcp_f32 v14, v14\ns_nop 0")
    for r in range(16): A(f"v_mul_f32 v{SA+r}, v{SA+r}, v14")
    for i in range(8): A(f"v_cvt_pk_bf16_f32 v{PF+i}, v{SA+2*i}, v{SA+2*i+1}")
    A("s_nop 1")
    def ocv(b):
        for i in range(8): A(f"v_cvt_pk_bf16_f32 v{OB[0]+8*b+i}, v{ACC+16*b+2*i}, v{ACC+16*b+2*i+1}")
        for s in range(2): A(f"buffer_store_dwordx4 v[{OB[0]+8*b+4*s}:{OB[0]+8*b+4*s+3}], v1, s[44:47], {'s3' if b > 1 else 's34'} offen offset:{(2*b+s)%4*1024} {o2}")
    for b in range(4):
        for s in range(2): A(f"v_mfma_f32_32x32x16_bf16 v[{ACC+16*b}:{ACC+16*b+15}], v[{VF+8*b+4*s}:{VF+8*b+4*s+3}], v[{PF+4*s}:{PF+4*s+3}], " + (f"v[{ACC+16*b}:{ACC+16*b+15}]" if s else "0"))
        if b >= 2: ocv(b - 2)
    ocv(2); ocv(3)
    rdy()
    for b in range(4): rd_w(0, b, 0)
    stamp()
    def ldn(p, so, fl, n, off=0): return "\n".join(f"buffer_load_dwordx4 v[{p+4*i}:{p+4*i+3}], v1, s[44:47], {so} offen offset:{off+1024*i} {fl}" for i in range(n))
    def olst(i): return [(OB[i % 4], f"s{4+2*(i%4)}", 4), (OB[i % 4] + 16, f"s{5+2*(i%4)}", 4)]
    def oload(i):
        so = 4 + 2*(i % 4)
        return f"s_lshr_b32 s101, s101, 4\ns_and_b32 s{so}, s101, 7\ns_xor_b32 s{so}, s{so}, s20\ns_lshl_b32 s{so}, s{so}, 16\ns_add_u32 s{so}, s{so}, s24\ns_add_u32 s{so+1}, s{so}, 4096\n" + "\n".join(ldn(p, s, psc, n) for p, s, n in olst(i))
    def mx(regs):
        r = [f"v_max3_u32 v14, v{regs[0]}, v{regs[1]}, v{regs[2]}"]
        for i in range(3, len(regs) - 1, 2): r.append(f"v_max3_u32 v14, v14, v{regs[i]}, v{regs[i+1]}")
        r.append(f"v_max_u32 v14, v14, v{regs[-1]}\nv_cmp_eq_u32 vcc, -1, v14")
        return r
    def chk(name, lst, cnt=0):
        m = mx([p+i for p, _, n in lst for i in range(4*n)])
        retry.append(f"L_rt{name}:\ns_sub_u32 s33, s33, 1\ns_cmp_lt_i32 s33, 0\ns_cbranch_scc1 L_ok{name}\n" + "\n".join(ldn(p, so, "sc1", n) for p, so, n in lst)
                     + "\ns_waitcnt vmcnt(0)\n" + "\n".join(m) + f"\ns_cbranch_vccnz L_rt{name}\ns_branch L_ok{name}")
        return [f"s_waitcnt vmcnt({cnt})"] + m + [f"s_cbranch_vccnz L_rt{name}\nL_ok{name}:"]
    def mf2(i, s, b):
        a = f"v[{ACC+16*b}:{ACC+16*b+15}]"; x = OB[i % 4] + 4*s; w = WF + 16*(s & 1) + 4*b
        A(f"v_mfma_f32_32x32x16_bf16 {a}, v[{w}:{w+3}], v[{x}:{x+3}], " + ("0" if i == 0 and s == 0 else a))
    A("s_mov_b32 s33, 0x40000")
    for i in range(8):
        ex = {}
        if i == 0:
            for k in range(1, PD + 1): ex[(p1, k)] = oload(k)
        elif i + PD < 8: ex[(0, 1)] = oload(i + PD)
        if i < 7:
            ck = chk(f"o{i}", olst(i + 1), 8*(min(i + PD, 7) - i - 1))
            q = 6 if i == 0 else pc
            for k in range(4): ex[(q, k)] = "\n".join(ck[[0, 5, 9, 13][k]:[5, 9, 13, 99][k]])
        for s in range(7):
            for b in range(4):
                A("s_waitcnt lgkmcnt(6)"); mf2(i, s, b); rd_w(s+1, b, (s & 1) ^ 1)
                if (s, b) in ex: A(ex[(s, b)])
                if s == 6 and b == 0 and i < 7: adv()
        if i == 7:
            for b in range(4): A(f"s_waitcnt lgkmcnt({6-2*b})"); mf2(i, 7, b)
            break
        sig()
        A("s_waitcnt lgkmcnt(8)"); mf2(i, 7, 0)
        for r in range(2, 6): A(f"v_add_u32 v{r}, s27, v{r}")
        A("s_waitcnt lgkmcnt(6)"); mf2(i, 7, 1)
        rdy()
        rd_w(0, 0, 0); mf2(i, 7, 2); rd_w(0, 1, 0); rd_w(0, 2, 0); mf2(i, 7, 3); rd_w(0, 3, 0)
        if i in (1, 2): stamp()
    stamp()
    OUT, SUM, IN, TMP = ACC, 128, 144, 168
    A("s_lshl_b32 s3, s16, 11\ns_sub_u32 s6, s34, s3\ns_add_u32 s6, s6, 32768\ns_add_u32 s7, s6, 4096\ns_lshl_b32 s4, s18, 19\ns_sub_u32 s5, s6, s4\ns_sub_u32 s5, s5, 2048")
    for b in range(4):
        A(f"s_cmp_eq_u32 s18, {b}\ns_cbranch_scc1 L_own{b}")
        A(f"s_sub_u32 s3, s18, {b}\ns_and_b32 s3, s3, 3\ns_lshl_b32 s3, s3, 11\ns_add_u32 s3, s3, s5")
        for i in range(8): A(f"v_cvt_pk_bf16_f32 v{HELD+8*b+i}, v{OUT+16*b+2*i}, v{OUT+16*b+2*i+1}")
        for i in range(2): A(f"buffer_store_dwordx4 v[{HELD+8*b+4*i}:{HELD+8*b+4*i+3}], v1, s[44:47], s3 offen offset:{1024*i} sc1")
        A(f"s_branch L_nxt{b}\nL_own{b}:")
        for r in range(16): A(f"v_mov_b32 v{SUM+r}, v{OUT+16*b+r}")
        A(f"L_nxt{b}:\ns_add_u32 s5, s5, {1<<19}")
    lst = [(IN, "s6", 4), (IN+16, "s7", 2)]
    for p, so, n in lst: A(ldn(p, so, "sc1", n))
    A("v_and_b32 v11, 31, v0\nv_lshrrev_b32 v12, 5, v0\nv_lshlrev_b32 v12, 4, v12\nv_lshl_add_u32 v12, v11, 12, v12\ns_mov_b32 s30, 0xffff0000")
    A("s_lshl_b32 s3, s23, 17\ns_lshl_b32 s4, s17, 11\ns_add_u32 s3, s3, s4\ns_lshl_b32 s4, s20, 8\ns_add_u32 s3, s3, s4\ns_lshl_b32 s4, s18, 6\ns_add_u32 s3, s3, s4")
    stamp()
    A("\n".join(chk("c", lst)))
    stamp()
    for i in range(24): A(f"v_lshlrev_b32 v{TMP+i}, 16, v{IN+i}\nv_and_b32 v{IN+i}, s30, v{IN+i}")
    for k in range(3):
        for i in range(8): A(f"v_add_f32 v{SUM+2*i}, v{SUM+2*i}, v{TMP+8*k+i}\nv_add_f32 v{SUM+2*i+1}, v{SUM+2*i+1}, v{IN+8*k+i}")
    for i in range(8): A(f"v_cvt_pk_bf16_f32 v{WF+i}, v{SUM+2*i}, v{SUM+2*i+1}")
    A(f"buffer_store_dwordx4 v[{WF}:{WF+3}], v12, s[12:15], s3 offen {osc}\nbuffer_store_dwordx4 v[{WF+4}:{WF+7}], v12, s[12:15], s3 offen offset:32 {osc}")
    if stamps or probe is not None: A("s_waitcnt vmcnt(0)")
    stamp()
    stamp_store(0)
    if probe is not None:
        if pwg >= 0: A(f"s_cmp_lg_u32 s2, {pwg}\ns_cbranch_scc1 L_end")
        if probe == -1: A("s_mov_b32 s62, s90")
        A("s_add_u32 s62, s62, 5000\nL_spin:\ns_sleep 4\ns_memrealtime s[64:65]\ns_waitcnt lgkmcnt(0)\ns_sub_u32 s64, s64, s62\ns_cmp_lt_i32 s64, 0\ns_cbranch_scc1 L_spin")
    A("L_end:\ns_endpgm")
    for r in retry: A(r)
    o.append(f'''.section .rodata,"a"
.p2align 6
.amdhsa_kernel {NAME}_kernel
  .amdhsa_next_free_vgpr 256
  .amdhsa_next_free_sgpr 102
  .amdhsa_accum_offset 256
  .amdhsa_group_segment_fixed_size 0
  .amdhsa_kernarg_size 104
  .amdhsa_user_sgpr_count 2
  .amdhsa_user_sgpr_kernarg_segment_ptr 1
  .amdhsa_system_sgpr_workgroup_id_x 1
.end_amdhsa_kernel''')
    return "\n".join(o) + "\n"

if __name__ == "__main__":
    kw = {}
    out = sys.argv[1]
    for a in sys.argv[2:]:
        k, v = a.split("=")
        kw[k] = int(v) if v.lstrip("-").isdigit() else v.replace('+', ' ')
    open(out, "w").write(gen(**kw))
```

```python
import sys, math
NAME = "concat_heads__gqa_block_cached__mha_block_cached__near_ridge"
HDR = open("cdna_kernels/%s.s.ref" % NAME).read().split("; @launch")[0]

def gen(D=1, tok=3, split=0, allhit=0, hk=0, D2=1, swp=0, PD=2, p1=3, pc=5, fo=1, po=0, o2='', wb=0, fx=0, cu=14, gl='glc', tok2=3, slc=-1, sl=1, prl=0, prc=0, ntw="", ntx="", ntk="", ntv="", stamps=False, g1=4, g2=1, fi=0, ki=-1, vi=-1, fsc="sc1", psc="", noload=0, nocomp=0, tl=0, hack16=0, osc="", probe=None, pwg=-1):
    o = []
    role = [0]
    def A(s):
        for l in s.split("\n"):
            if noload and "offen" in l and l.strip().endswith("lds"): continue
            if nocomp & 1 and l.strip().startswith("v_mfma"): continue
            if nocomp & 2 and l.strip().startswith("ds_read") and "ds_read_b32" not in l: continue
            o.append("    " + l.strip() if not l.strip().endswith(":") else l.strip())
    S = 4; RB = 2048
    STG = RB + S * 32768; LDS = STG + 16384
    STAMP = 1 << 26
    nst = [0]
    def stamp():
        if probe is not None and role[0] == 0:
            if nst[0] == 0: A("s_memrealtime s[60:61]\ns_waitcnt lgkmcnt(0)\ns_mov_b32 s62, s60")
            elif nst[0] == probe: A("s_memrealtime s[62:63]\ns_waitcnt lgkmcnt(0)")
            nst[0] += 1
        if stamps:
            if nst[0] == 0: A("s_memtime s[96:97]")
            A(f"s_memrealtime s[{60+2*nst[0]}:{61+2*nst[0]}]\ns_memtime s[98:99]\ns_waitcnt lgkmcnt(0)")
            nst[0] += 1
    def stamp_store(role):
        if stamps:
            A(f"s_lshl_b32 s3, s2, 10\ns_lshl_b32 s4, s16, 7\ns_add_u32 s3, s3, s4\ns_add_u32 s3, s3, {STAMP}\nv_mov_b32 v1, 0")
            for i in range(nst[0]):
                A(f"v_mov_b32 v2, s{60+2*i}\nbuffer_store_dword v2, v1, s[44:47], s3 offen offset:{4*i}")
            A(f"s_sub_u32 s98, s98, s96\nv_mov_b32 v2, s98\nbuffer_store_dword v2, v1, s[44:47], s3 offen offset:120\nv_mov_b32 v2, {nst[0]}\nbuffer_store_dword v2, v1, s[44:47], s3 offen offset:124")
            A("v_mov_b32 v2, s90\nbuffer_store_dword v2, v1, s[44:47], s3 offen offset:116\ns_waitcnt vmcnt(0)")
    o.append(HDR + f"; @launch grid=(256,1,1) block=(512,1,1) lds={LDS}")
    o.append(f'.amdgcn_target "amdgcn-amd-amdhsa--gfx950"\n.text\n.globl {NAME}_kernel\n.p2align 8\n.type {NAME}_kernel,@function\n{NAME}_kernel:')
    if stamps or probe == -1: A("s_memrealtime s[90:91]")
    A("s_cmp_ge_u32 s2, 256\ns_cbranch_scc1 L_end")
    A("s_bfe_u32 s17, s2, 0x10002\ns_and_b32 s18, s2, 3\ns_lshr_b32 s19, s2, 6\ns_bfe_u32 s20, s2, 0x30003")
    A("s_mul_i32 s3, s17, 40\ns_add_u32 s4, s0, s3\ns_addc_u32 s5, s1, 0")
    A("s_load_dwordx8 s[24:31], s[4:5], 0\ns_load_dwordx2 s[32:33], s[4:5], 32\ns_load_dwordx4 s[36:39], s[0:1], 80\ns_load_dwordx2 s[44:45], s[0:1], 96")
    A("v_lshrrev_b32 v1, 6, v0\nv_and_b32 v0, 63, v0\nv_readfirstlane_b32 s16, v1")
    A("s_lshl_b32 s21, s17, 2\ns_add_u32 s21, s21, s19\ns_lshl_b32 s21, s21, 5")
    A("s_mov_b32 s92, 0x1000000\ns_mov_b32 s46, 0x10000000\ns_mov_b32 s47, 0x20000")
    def order2(r):
        seq = [0]
        for p in range(1, 8):
            seq.append(p + D2 if D2 and (p + D2) % 4 == r and p + D2 < 8 and p + D2 not in seq else min(x for x in range(8) if x not in seq))
        return seq
    for r in range(4):
        v = sum(t << (4*p) for p, t in enumerate(order2(r)))
        A(f"s_mov_b32 s101, {v:#x}" if r == 0 else f"s_cmp_eq_u32 s19, {r}\ns_cselect_b32 s101, {v:#x}, s101")
    A("v_lshlrev_b32 v13, 2, v0\nv_mov_b32 v12, 0\ns_cmp_ge_u32 s16, 4\ns_cbranch_scc0 L_compute")
    role[0] = 1
    if prl: A(f"s_setprio {prl}")
    A("s_and_b32 s22, s16, 3")
    A("v_cmp_eq_u32 vcc, 4, v0\nv_cndmask_b32 v12, v12, -3, vcc\nds_write_b32 v13, v12")
    A("s_lshl_b32 s23, s19, 2")
    A("s_lshl_b32 s34, s18, 3\ns_add_u32 s34, s34, s20")
    A("v_lshrrev_b32 v1, 3, v0\nv_lshrrev_b32 v2, 4, v0\nv_and_b32 v3, 7, v0\nv_xor_b32 v3, v3, v2\nv_lshlrev_b32 v3, 4, v3")
    A("v_xor_b32 v4, 64, v3")
    A("v_and_b32 v5, 15, v0\nv_lshlrev_b32 v6, 2, v2\nv_xor_b32 v6, v5, v6\nv_lshlrev_b32 v6, 4, v6")
    A("s_lshl_b32 s3, s23, 16")
    A("v_lshl_add_u32 v7, v1, 11, s3")
    for jj in range(4): A(f"v_add_u32 v{8+jj}, {jj*(16384-1024)}, v7\nv_add_u32 v{8+jj}, v{8+jj}, v{3+(jj&1)}")
    A("s_lshl_b32 s3, s34, 8\nv_lshl_add_u32 v7, v2, 13, s3\nv_add_u32 v7, v7, v6")
    for jj in range(4): A(f"v_add_u32 v{12+jj}, {jj*(32768-1024)}, v7")
    A("s_cmp_eq_u32 s17, 0\ns_cselect_b32 s35, 0, 8192\ns_cselect_b32 s14, 19, 22\ns_cselect_b32 s58, 15, 18\ns_cselect_b32 s59, 13, 16")
    A("s_lshl_b32 s89, 1, s58\ns_lshl_b32 s58, s23, s58\ns_lshl_b32 s59, s18, s59\ns_add_u32 s58, s58, s59")
    A("s_lshl_b32 s3, s18, 21\ns_lshl_b32 s59, s20, 8\ns_add_u32 s3, s3, s59\nv_lshl_add_u32 v7, v2, 11, s3\nv_add_u32 v7, v7, v6")
    for jj in range(4): A(f"v_add_u32 v{20+jj}, {jj*(8192-1024)}, v7")
    A("s_mul_i32 s59, s20, s35\ns_add_u32 s58, s58, s59\nv_lshl_add_u32 v7, v2, 8, s58\nv_lshl_add_u32 v5, v1, 8, s58")
    for jj in range(4): A(f"v_add_u32 v{24+jj}, {jj*1024}, v5\nv_add_u32 v{24+jj}, v{24+jj}, v{3+(jj&1)}")
    A("v_add_u32 v16, v7, v6")
    A("v_lshl_add_u32 v28, v0, 7, s58")
    def order(r):
        if allhit: return [0]*16
        if D < 0: return [p ^ (r & (g1-1)) for p in range(16)]
        seq = []
        for p in range(16):
            t = p + D if (p + D) % 4 == r and p + D < 16 and p + D not in seq else min(x for x in range(16) if x not in seq)
            seq.append(t)
        return seq
    A("s_add_u32 s3, s19, s20\ns_and_b32 s3, s3, 3")
    for r in range(4):
        v = sum(t << (4*p) for p, t in enumerate(order(r)))
        if r == 0: A(f"s_mov_b32 s40, {v & 0xffffffff:#x}\ns_mov_b32 s41, {v >> 32:#x}")
        else: A(f"s_cmp_eq_u32 s3, {r}\ns_cselect_b32 s40, {v & 0xffffffff:#x}, s40\ns_cselect_b32 s41, {v >> 32:#x}, s41")
    A(f"s_sub_u32 s3, s3, {max(D,0)}\ns_and_b32 s3, s3, {3 if D >= 0 else 0}\ns_add_u32 s100, s3, {fo}\ns_and_b32 s100, s100, 3\ns_cmp_eq_u32 s100, s22\ns_cselect_b32 s100, 0, 99\ns_add_u32 s56, s3, {po}\ns_and_b32 s56, s56, 3\ns_cmp_eq_u32 s56, s22\ns_cselect_b32 s56, 0, 99")
    A("s_lshl_b32 s3, s22, 2\ns_lshr_b64 s[40:41], s[40:41], s3")
    A(f"s_lshl_b32 s57, s22, 15\ns_add_u32 s57, s57, {RB}")
    A("v_and_b32 v30, 3, v0\nv_lshlrev_b32 v30, 8, v30\nv_add_u32 v30, 256, v30\nv_cmp_lt_u32 vcc, 3, v0\nv_cndmask_b32 v30, v30, 16, vcc\nv_mov_b32 v31, s3\nv_mov_b32 v33, 16")
    A("s_waitcnt lgkmcnt(0)\ns_barrier\ns_mov_b32 s88, s29\ns_sub_u32 s29, s22, 3")
    A("s_mov_b32 s4, s24\ns_and_b32 s5, s25, 0xffff\ns_mov_b32 s6, 0x100000\ns_mov_b32 s7, 0x20000")
    A("s_mov_b32 s8, s30\ns_and_b32 s9, s31, 0xffff\ns_mov_b32 s10, 0x800000\ns_mov_b32 s11, 0x20000")
    A("s_lshl_b32 s14, 1, s14\ns_mov_b32 s12, s26\ns_and_b32 s13, s27, 0xffff\ns_mov_b32 s15, 0x20000")
    A("s_mov_b32 s48, s28\ns_and_b32 s49, s88, 0xffff\ns_mov_b32 s50, s14\ns_mov_b32 s51, 0x20000")
    A("s_mov_b32 s52, s32\ns_and_b32 s53, s33, 0xffff\ns_mov_b32 s54, 0x800000\ns_mov_b32 s55, 0x20000")
    nl = [0]
    def tls(i):
        if tl: A(f"s_memrealtime s[94:95]\ns_add_u32 s93, s29, 3\ns_lshr_b32 s93, s93, 2\ns_lshl_b32 s93, s93, 1\ns_add_u32 m0, s93, {i}\ns_waitcnt lgkmcnt(0)\nv_writelane_b32 v34, s94, m0")
    def pre():
        n = nl[0]; nl[0] += 1
        A(f"s_branch L_pe{n}\nL_pw{n}:\ns_sub_u32 s92, s92, 1\ns_cmp_lt_i32 s92, 0\ns_cbranch_scc1 L_px{n}\ns_sleep {sl}\nL_pe{n}:\nds_read_b32 v32, v30\ns_waitcnt lgkmcnt(0)\nv_cmp_gt_i32 vcc, s29, v32\ns_cbranch_vccnz L_pw{n}\nL_px{n}:")
        tls(0)
    def issue(srd, vb, so, step, fl, g0, x=0, vs=1, n=4, tok=tok, mb=None):
        for g in range(g0, g0 + n):
            A(f"s_add_u32 m0, s57, {(g^x)*4096}" if mb is None else f"s_mov_b32 m0, {mb+g*4096}")
            if g > g0: A(f"s_add_u32 {so}, {so}, {step[(g-g0-1) % len(step)]}")
            else: A("s_nop 0")
            for jj in range(4): A(f"buffer_load_dwordx4 v{vb+jj*vs}, {srd}, {so} offen offset:{jj*1024} {fl} lds")
            if g + 1 == tok: A("s_add_u32 s3, s29, 1\nv_mov_b32 v32, s3\nds_write_b32 v33, v32")
    def post(mid=None):
        A("s_add_u32 s3, s29, 4\nv_mov_b32 v35, s3\ns_waitcnt vmcnt(0)")
        if mid: A(mid)
        A("ds_write_b32 v31, v35")
        tls(1)
        A("s_add_u32 s29, s29, 4")
    stamp()
    A("L_l1:")
    pre()
    def fills(g0, n):
        A(f"s_add_u32 s3, s21, s34\ns_lshl_b32 s3, s3, 16\ns_add_u32 s3, s3, {g0*4096}\nv_lshlrev_b32 v36, 4, v0\ns_and_b32 s45, s45, 0xffff")
        for r in range(4): A(f"v_mov_b32 v{40+r}, -1")
        for g in range(n):
            for jj in range(4): A(f"buffer_store_dwordx4 v[40:43], v36, s[44:47], s3 offen offset:{jj*1024} {fsc}")
            if g < n - 1: A("s_add_u32 s3, s3, 4096")
    def touch(srd):
        A("s_mov_b32 s3, 0")
        for g in range(4): A(f"buffer_load_dword v29, v28, {srd}, s3 offen\ns_add_u32 s3, s3, s89")
    for it in range(1, 4):
        if it in (2, ki, vi):
            A(f"s_cmp_lg_u32 s100, {it}\ns_cbranch_scc1 L_x{it}")
            if it == 2: A("s_add_u32 s3, s21, s34\nv_mov_b32 v36, s3\ns_getreg_b32 s3, hwreg(HW_REG_XCC_ID, 0, 4)\ns_or_b32 s3, s3, 16\nv_mov_b32 v37, s3\ns_mov_b64 exec, 1\ns_waitcnt vmcnt(0)\nglobal_store_byte v36, v37, s[38:39] sc1\ns_mov_b64 exec, -1")
            if it == ki: touch("s[12:15]")
            if it == vi: touch("s[48:51]")
            A(f"L_x{it}:")
    A(f"s_cmp_lg_u32 s29, {cu-3}\ns_cbranch_scc1 L_nfl\ns_load_dwordx8 s[80:87], s[38:39], s21 {gl}\nL_nfl:")
    A("s_and_b32 s3, s40, 15\ns_lshr_b64 s[40:41], s[40:41], 16\ns_lshl_b32 s42, s3, 19\ns_lshl_b32 s43, s3, 7")
    issue("s[8:11]", 12, "s42", [1 << 17], ntw, 0)
    issue("s[4:7]", 8, "s43", [1 << 16], ntx, 4)
    A("s_cmp_gt_u32 s56, 3\ns_cbranch_scc1 L_np\ns_and_b32 s3, s56, 1\ns_cmp_gt_u32 s56, 1\ns_cbranch_scc1 L_pv\ns_lshl_b32 s42, s3, 7")
    issue("s[12:15]", 24, "s42", ["s89"], ntk, 0, tok=-1, mb=STG)
    A("s_branch L_pd\nL_pv:\ns_lshl_b32 s42, s3, 12")
    issue("s[48:51]", 16, "s42", ["s89"], ntv, 0, vs=0, tok=-1, mb=STG)
    A("L_pd:\ns_add_u32 s56, s56, 1\nL_np:\ns_add_u32 s100, s100, 1")
    for it, (g0, n) in enumerate(((0, 8), (8, 6))):
        A(f"s_cmp_lg_u32 s100, {it+1}\ns_cbranch_scc1 L_ns{it}")
        fills(g0, n)
        A(f"s_add_u32 s3, s29, 4\nv_mov_b32 v35, s3\ns_waitcnt vmcnt({4*n})\ns_branch L_nw\nL_ns{it}:")
    A("L_ns:")
    post(f"L_nw:\ns_cmp_eq_u32 s29, {cu-3}\ns_cbranch_scc1 L_fchk\nL_fret:")
    A("s_cmp_lt_i32 s29, 13\ns_cbranch_scc1 L_l1")
    stamp()
    A("L_l2:")
    pre()
    A("s_sub_u32 s3, s29, 13\ns_lshl_b32 s3, s3, 2\ns_lshr_b32 s42, s101, s3\ns_and_b32 s42, s42, 7\ns_xor_b32 s42, s42, s20\ns_lshl_b32 s42, s42, 18")
    issue("s[52:55]", 20, "s42", [1 << 15], ntw, 0, n=8, tok=tok2)
    post()
    A("s_cmp_lt_i32 s29, 21\ns_cbranch_scc1 L_l2")
    if wb: A(f"s_lshr_b32 s3, s2, 3\ns_lshl_b32 s3, s3, 2\ns_add_u32 s3, s3, s22\ns_cmp_lg_u32 s3, {wb-1}\ns_cbranch_scc1 L_lend\nbuffer_wbl2 sc1\ns_waitcnt vmcnt(0)")
    A("L_lend:")
    stamp()
    if stamps: A("s_and_b32 s45, s45, 0xffff")
    stamp_store(1)
    if tl: A(f"s_lshl_b32 s3, s2, 2\ns_add_u32 s3, s3, s22\ns_lshl_b32 s3, s3, 8\ns_add_u32 s3, s3, {STAMP + (1<<20)}\nv_lshlrev_b32 v1, 2, v0\nbuffer_store_dword v34, v1, s[44:47], s3 offen\ns_waitcnt vmcnt(0)")
    role[0] = 0
    A("s_endpgm")
    A("L_fchk:\ns_mov_b32 s33, 0x40000\ns_mov_b32 s59, 0x10101010\ns_waitcnt lgkmcnt(0)")
    A("s_and_b64 s[42:43], s[80:81], s[82:83]\ns_and_b64 s[42:43], s[42:43], s[84:85]\ns_and_b64 s[42:43], s[42:43], s[86:87]\ns_and_b32 s42, s42, s43\ns_and_b32 s42, s42, s59\ns_cmp_lg_u32 s42, s59\ns_cbranch_scc1 L_fp\nL_fok:")
    late = ("L_fp:\nv_and_b32 v38, 7, v0\nv_lshl_add_u32 v38, v38, 2, s21\nL_fp1:\nglobal_load_dword v39, v38, s[38:39] sc1\ns_waitcnt vmcnt(0)\n"
                 + "".join(f"v_readlane_b32 s{80+i}, v39, {i}\n" for i in range(8))
                 + "v_and_b32 v39, s59, v39\nv_cmp_ne_u32 vcc, s59, v39\ns_cbranch_vccz L_fok\ns_sub_u32 s33, s33, 1\ns_cbranch_scc1 L_fok\ns_sleep 8\ns_branch L_fp1")
    for k in range(1, 4): A(f"s_cmp_eq_u32 s18, {k}\ns_cselect_b64 s[80:81], s[{80+2*k}:{81+2*k}], s[80:81]")
    A(f"s_getreg_b32 s42, hwreg(HW_REG_XCC_ID, 0, 4)\ns_or_b32 s42, s42, {16+32*fx}\ns_mul_i32 s42, s42, 0x01010101\ns_mov_b32 s43, s42\ns_cmp_eq_u64 s[42:43], s[80:81]")
    A("s_cselect_b32 s42, 1, 0\nv_mov_b32 v38, 32\nv_mov_b32 v39, s42\nds_write_b32 v38, v39\ns_branch L_fret\n" + late)
    nst[0] = 0
    A("L_compute:")
    if prc: A(f"s_setprio {prc}")
    A("s_lshl_b32 s3, s16, 8\ns_add_u32 s3, s3, 256\nv_add_u32 v16, s3, v13\nds_write_b32 v16, v12")
    ACC, OUT, HELD, WF, XF, PF = 64, 128, 192, 16, 48, 56
    A("v_lshrrev_b32 v10, 5, v0\nv_bfe_u32 v11, v0, 2, 2\nv_bfe_u32 v12, v0, 4, 1\nv_and_b32 v13, 1, v0\nv_bfe_u32 v14, v0, 1, 1")
    A("v_lshl_add_u32 v15, v10, 3, v11\nv_lshlrev_b32 v15, 8, v15\nv_lshl_add_u32 v15, v11, 6, v15\nv_lshl_add_u32 v15, v12, 5, v15\nv_lshl_add_u32 v15, v13, 4, v15\nv_lshl_add_u32 v2, v14, 3, v15")
    A(f"v_add_u32 v2, {RB}, v2")
    for b in range(1, 4): A(f"v_xor_b32 v{2+b}, {b*64}, v2")
    A("v_and_b32 v11, 31, v0\nv_bfe_u32 v12, v0, 1, 3\nv_xor_b32 v12, v12, v10\nv_lshlrev_b32 v12, 4, v12\nv_lshl_add_u32 v12, v11, 7, v12")
    A(f"s_lshl_b32 s3, s16, 12\ns_add_u32 s3, s3, {16384+RB}\nv_add_u32 v6, s3, v12")
    for s in range(1, 4): A(f"v_xor_b32 v{6+s}, {s*32}, v6")
    A("v_lshlrev_b32 v1, 4, v0")
    for r in range(64): A(f"v_mov_b32 v{ACC+r}, 0")
    A("s_lshl_b32 s23, s19, 2\ns_add_u32 s23, s23, s16")
    A("s_waitcnt lgkmcnt(0)\ns_barrier")
    A("s_lshl_b32 s25, s18, 3\ns_add_u32 s25, s25, s21\ns_lshl_b32 s24, s25, 16\ns_lshl_b32 s3, s16, 13\ns_add_u32 s24, s24, s3\ns_add_u32 s25, s25, s20")
    A("s_lshl_b32 s34, s20, 16\ns_add_u32 s34, s34, s24")
    A("v_mov_b32 v13, v16\nv_mov_b32 v12, 0\nv_mov_b32 v11, 0")
    A("s_and_b32 s45, s45, 0xffff")
    A("s_mov_b32 s12, s36\ns_and_b32 s13, s37, 0xffff\ns_mov_b32 s14, 0x200000\ns_mov_b32 s15, 0x20000")
    A("s_mov_b32 s26, 0")
    def rd_w(s, b, buf):
        A(f"ds_read_b64_tr_b16 v[{WF+16*buf+4*b}:{WF+16*buf+4*b+1}], v{2+b} offset:{s*4096}")
        A(f"ds_read_b64_tr_b16 v[{WF+16*buf+4*b+2}:{WF+16*buf+4*b+3}], v{2+b} offset:{s*4096+1024}")
    def rd_x(s, buf): A(f"ds_read_b128 v[{XF+4*buf}:{XF+4*buf+3}], v{6+s}")
    def mf(ph, b, buf, first):
        w = f"v[{WF+16*buf+4*b}:{WF+16*buf+4*b+3}]"; x = f"v[{XF+4*buf}:{XF+4*buf+3}]"; a = f"v[{ACC+16*b}:{ACC+16*b+15}]"
        c = "0" if first else a
        if hack16:
            for h in range(2):
                r0 = ACC+16*b+8*buf+4*h
                xx = f"v[{XF+4*(buf^h)}:{XF+4*(buf^h)+3}]"
                A(f"v_mfma_f32_16x16x32_bf16 v[{r0}:{r0+3}], {w}, {xx}, v[{r0}:{r0+3}]")
            return
        A(f"v_mfma_f32_32x32x16_bf16 {a}, {w}, {x}, {c}" if ph == 1 else f"v_mfma_f32_32x32x16_bf16 {a}, {x}, {w}, {c}")
    retry = []
    nw = [0]
    def adv(): A(f"s_add_u32 s26, s26, 1\ns_cmp_eq_u32 s26, {S}\ns_cselect_b32 s26, 0, s26\ns_cselect_b32 s27, {-(S-1)*32768 & 0xffffffff}, s28\nv_add_u32 v12, 1, v12\nv_lshlrev_b32 v11, 2, s26")
    def sig(): A("ds_write_b32 v13, v12\nds_read_b32 v10, v11")
    def rdy():
        n = nw[0]; nw[0] += 1
        A(f"L_rc{n}:\ns_waitcnt lgkmcnt(0)\nv_cmp_le_u32 vcc, v10, v12\ns_cbranch_vccnz L_rw{n}\nL_rx{n}:")
        retry.append(f"L_rw{n}:\ns_sub_u32 s92, s92, 1\ns_cmp_lt_i32 s92, 0\ns_cbranch_scc1 L_rx{n}\n{'' if slc < 0 else 's_sleep %d' % slc}\nds_read_b32 v10, v11\ns_branch L_rc{n}")
    def tile(ph, first=False, extra=None, tail=None):
        extra = extra or {}
        for s in range(3):
            buf = s & 1
            for b in range(4):
                A(f"s_waitcnt lgkmcnt({6 if b == 0 else 7})")
                mf(ph, b, buf, first and s == 0)
                if b == 0: rd_x(s+1, buf ^ 1)
                rd_w(s+1, b, buf ^ 1)
                if (s, b) in extra: A(extra[(s, b)])
                if s == 2 and b == 0: adv()
        if tail == "last":
            for b in range(4): A(f"s_waitcnt lgkmcnt({6-2*b})"); mf(ph, b, 1, False)
            return
        sig()
        A("s_waitcnt lgkmcnt(8)"); mf(ph, 0, 1, False)
        for r in range(2, 6): A(f"v_add_u32 v{r}, s27, v{r}")
        A("s_waitcnt lgkmcnt(6)"); mf(ph, 1, 1, False)
        for r in range(6, 10): A(f"v_add_u32 v{r}, s27, v{r}")
        if tail == "k":
            for b in (2, 3): A(f"s_waitcnt lgkmcnt({8-2*b})"); mf(ph, b, 1, False)
            return
        rdy()
        rd_x(0, 0); rd_w(0, 0, 0)
        mf(ph, 2, 1, False)
        rd_w(0, 1, 0); rd_w(0, 2, 0)
        mf(ph, 3, 1, False)
        rd_w(0, 3, 0)
    A("s_mov_b32 s28, 32768")
    KF, SA, VF = 128, 160, 224
    A(f"s_lshl_b32 s3, s16, 12\ns_add_u32 s3, s3, {STG-RB}\nv_lshrrev_b32 v15, 5, v0\nv_lshlrev_b32 v15, 10, v15\nv_sub_u32 v15, s3, v15\nv_mov_b32 v10, 0")
    for k in range(4): A(f"v_add_u32 v{PF+k}, {STG-RB-16384}, v{6+k}\nv_add_u32 v{PF+4+k}, v{2+k}, v15")
    A(f"s_add_u32 s35, s19, s20\ns_add_u32 s35, s35, {po-D+4}\ns_and_b32 s35, s35, 3\ns_mov_b32 s31, 0")
    def piece(n, ks):
        r = f"L_pc{n}:\ns_waitcnt lgkmcnt(4)\ns_add_u32 s31, s31, 1\n"
        for k in ks:
            if k < 3: r += f"s_cmp_lg_u32 s31, {k+1}\ns_cbranch_scc1 L_pc{n}{k}\n"
            if k < 2: r += "".join(f"ds_read_b128 v[{KF+16*k+4*s}:{KF+16*k+4*s+3}], v{PF+s}\n" for s in range(4))
            else: r += "".join(f"ds_read_b64_tr_b16 v[{VF+8*b+4*(k-2)+2*h}:{VF+8*b+4*(k-2)+2*h+1}], v{PF+4+b} offset:{h*2048}\n" for b in range(4) for h in range(2))
            r += f"s_branch L_pr{n}\nL_pc{n}{k}:\n" if k < 3 else f"s_branch L_pr{n}"
        retry.append(r)
        return {(0, 1): f"s_cmp_eq_u32 s26, s35\ns_cbranch_scc1 L_pc{n}\nL_pr{n}:"}
    stamp()
    rdy()
    stamp()
    rd_x(0, 0)
    for b in range(4): rd_w(0, b, 0)
    if split:
        A(f"s_mov_b32 s29, {split}\nL_p0:")
        tile(1)
        A("s_sub_u32 s29, s29, 1\ns_cmp_lg_u32 s29, 0\ns_cbranch_scc1 L_p0")
        stamp()
    A(f"s_mov_b32 s29, {15-split}\nL_p1:")
    tile(1, extra=piece("a", range(4)))
    A("s_sub_u32 s29, s29, 1\ns_cmp_lg_u32 s29, 0\ns_cbranch_scc1 L_p1")
    tile(1, tail="k", extra={**piece("b", [3]), (0, 2): "v_mov_b32 v15, 32\nds_read_b32 v15, v15"})
    stamp()
    OB = [128, 160, 192, 224]
    for i in range(16): A(f"v_cvt_pk_bf16_f32 v{HELD+i}, v{ACC+2*i}, v{ACC+2*i+1}")
    for ks in range(8):
        A(f"v_mfma_f32_32x32x16_bf16 v[{SA}:{SA+15}], v[{KF+4*ks}:{KF+4*ks+3}], v[{HELD+4*ks}:{HELD+4*ks+3}], " + ("0" if ks == 0 else f"v[{SA}:{SA+15}]"))
        if ks < 4:
            for i in range(16+4*ks, 20+4*ks): A(f"v_cvt_pk_bf16_f32 v{HELD+i}, v{ACC+2*i}, v{ACC+2*i+1}")
    import struct
    c = struct.unpack("<I", struct.pack("<f", math.log2(math.e) / math.sqrt(128.0)))[0]
    A(f"s_mov_b32 s30, {c:#x}\ns_add_u32 s3, s34, 4096\nv_readfirstlane_b32 s4, v15\ns_nop 7\ns_cmp_eq_u32 s4, 1")
    A(f"v_max3_f32 v14, v{SA}, v{SA+1}, v{SA+2}")
    for r in range(3, 15, 2): A(f"v_max3_f32 v14, v14, v{SA+r}, v{SA+r+1}")
    A(f"v_max_f32 v14, v14, v{SA+15}\nv_mov_b32 v15, v14\ns_nop 1\nv_permlane32_swap_b32 v14, v15\ns_nop 1\nv_max_f32 v14, v14, v15\nv_mul_f32 v14, s30, v14")
    for r in range(16): A(f"v_fma_f32 v{SA+r}, v{SA+r}, s30, -v14")
    for r in range(16): A(f"v_exp_f32 v{SA+r}, v{SA+r}")
    A(f"s_nop 0\nv_add_f32 v14, v{SA}, v{SA+1}\nv_add_f32 v15, v{SA+2}, v{SA+3}")
    for r in range(4, 16, 2): A(f"v_add_f32 v14, v14, v{SA+r}\nv_add_f32 v15, v15, v{SA+r+1}")
    A("v_add_f32 v14, v14, v15\nv_mov_b32 v15, v14\ns_nop 1\nv_permlane32_swap_b32 v14, v15\ns_nop 1\nv_add_f32 v14, v14, v15\nv_rcp_f32 v14, v14\ns_nop 0")
    for r in range(16): A(f"v_mul_f32 v{SA+r}, v{SA+r}, v14")
    for i in range(8): A(f"v_cvt_pk_bf16_f32 v{PF+i}, v{SA+2*i}, v{SA+2*i+1}")
    A("s_nop 1")
    def ocv(b):
        for i in range(8): A(f"v_cvt_pk_bf16_f32 v{OB[0]+8*b+i}, v{ACC+16*b+2*i}, v{ACC+16*b+2*i+1}")
        st = lambda fl: "".join(f"buffer_store_dwordx4 v[{OB[0]+8*b+4*s}:{OB[0]+8*b+4*s+3}], v1, s[44:47], {'s3' if b > 1 else 's34'} offen offset:{(2*b+s)%4*1024} {fl}\n" for s in range(2))
        A(f"s_cbranch_scc0 L_os{b}\n" + st(o2) + f"L_or{b}:")
        retry.append(f"L_os{b}:\n" + st("sc1") + f"s_branch L_or{b}")
    for b in range(4):
        for s in range(2): A(f"v_mfma_f32_32x32x16_bf16 v[{ACC+16*b}:{ACC+16*b+15}], v[{VF+8*b+4*s}:{VF+8*b+4*s+3}], v[{PF+4*s}:{PF+4*s+3}], " + (f"v[{ACC+16*b}:{ACC+16*b+15}]" if s else "0"))
        if b >= 2: ocv(b - 2)
    ocv(2); ocv(3)
    rdy()
    for b in range(4): rd_w(0, b, 0)
    stamp()
    def ldn(p, so, fl, n, off=0): return "\n".join(f"buffer_load_dwordx4 v[{p+4*i}:{p+4*i+3}], v1, s[44:47], {so} offen offset:{off+1024*i} {fl}" for i in range(n))
    def olst(i): return [(OB[i % 4], f"s{4+2*(i%4)}", 4), (OB[i % 4] + 16, f"s{5+2*(i%4)}", 4)]
    def oload(i):
        so = 4 + 2*(i % 4)
        return f"s_lshr_b32 s101, s101, 4\ns_and_b32 s{so}, s101, 7\ns_xor_b32 s{so}, s{so}, s20\ns_lshl_b32 s{so}, s{so}, 16\ns_add_u32 s{so}, s{so}, s24\ns_add_u32 s{so+1}, s{so}, 4096\n" + "\n".join(ldn(p, s, psc, n) for p, s, n in olst(i))
    def mx(regs):
        r = [f"v_max3_u32 v14, v{regs[0]}, v{regs[1]}, v{regs[2]}"]
        for i in range(3, len(regs) - 1, 2): r.append(f"v_max3_u32 v14, v14, v{regs[i]}, v{regs[i+1]}")
        r.append(f"v_max_u32 v14, v14, v{regs[-1]}\nv_cmp_eq_u32 vcc, -1, v14")
        return r
    def chk(name, lst, cnt=0):
        m = mx([p+i for p, _, n in lst for i in range(4*n)])
        retry.append(f"L_rt{name}:\ns_sub_u32 s33, s33, 1\ns_cmp_lt_i32 s33, 0\ns_cbranch_scc1 L_ok{name}\n" + "\n".join(ldn(p, so, "sc1", n) for p, so, n in lst)
                     + "\ns_waitcnt vmcnt(0)\n" + "\n".join(m) + f"\ns_cbranch_vccnz L_rt{name}\ns_branch L_ok{name}")
        return [f"s_waitcnt vmcnt({cnt})"] + m + [f"s_cbranch_vccnz L_rt{name}\nL_ok{name}:"]
    def mf2(i, s, b):
        a = f"v[{ACC+16*b}:{ACC+16*b+15}]"; x = OB[i % 4] + 4*s; w = WF + 16*(s & 1) + 4*b
        A(f"v_mfma_f32_32x32x16_bf16 {a}, v[{w}:{w+3}], v[{x}:{x+3}], " + ("0" if i == 0 and s == 0 else a))
    A("s_mov_b32 s33, 0x40000")
    for i in range(8):
        ex = {}
        if i == 0:
            for k in range(1, PD + 1): ex[(p1, k)] = oload(k)
        elif i + PD < 8: ex[(0, 1)] = oload(i + PD)
        if i < 7:
            ck = chk(f"o{i}", olst(i + 1), 8*(min(i + PD, 7) - i - 1))
            q = 6 if i == 0 else pc
            for k in range(4): ex[(q, k)] = "\n".join(ck[[0, 5, 9, 13][k]:[5, 9, 13, 99][k]])
        for s in range(7):
            for b in range(4):
                A("s_waitcnt lgkmcnt(6)"); mf2(i, s, b); rd_w(s+1, b, (s & 1) ^ 1)
                if (s, b) in ex: A(ex[(s, b)])
                if s == 6 and b == 0 and i < 7: adv()
        if i == 7:
            for b in range(4): A(f"s_waitcnt lgkmcnt({6-2*b})"); mf2(i, 7, b)
            break
        sig()
        A("s_waitcnt lgkmcnt(8)"); mf2(i, 7, 0)
        for r in range(2, 6): A(f"v_add_u32 v{r}, s27, v{r}")
        A("s_waitcnt lgkmcnt(6)"); mf2(i, 7, 1)
        rdy()
        rd_w(0, 0, 0); mf2(i, 7, 2); rd_w(0, 1, 0); rd_w(0, 2, 0); mf2(i, 7, 3); rd_w(0, 3, 0)
        if i in (1, 2): stamp()
    stamp()
    OUT, SUM, IN, TMP = ACC, 128, 144, 168
    A("s_lshl_b32 s3, s16, 11\ns_sub_u32 s6, s34, s3\ns_add_u32 s6, s6, 32768\ns_add_u32 s7, s6, 4096\ns_lshl_b32 s4, s18, 19\ns_sub_u32 s5, s6, s4\ns_sub_u32 s5, s5, 2048")
    for b in range(4):
        A(f"s_cmp_eq_u32 s18, {b}\ns_cbranch_scc1 L_own{b}")
        A(f"s_sub_u32 s3, s18, {b}\ns_and_b32 s3, s3, 3\ns_lshl_b32 s3, s3, 11\ns_add_u32 s3, s3, s5")
        for i in range(8): A(f"v_cvt_pk_bf16_f32 v{HELD+8*b+i}, v{OUT+16*b+2*i}, v{OUT+16*b+2*i+1}")
        for i in range(2): A(f"buffer_store_dwordx4 v[{HELD+8*b+4*i}:{HELD+8*b+4*i+3}], v1, s[44:47], s3 offen offset:{1024*i} sc1")
        A(f"s_branch L_nxt{b}\nL_own{b}:")
        for r in range(16): A(f"v_mov_b32 v{SUM+r}, v{OUT+16*b+r}")
        A(f"L_nxt{b}:\ns_add_u32 s5, s5, {1<<19}")
    lst = [(IN, "s6", 4), (IN+16, "s7", 2)]
    for p, so, n in lst: A(ldn(p, so, "sc1", n))
    A("v_and_b32 v11, 31, v0\nv_lshrrev_b32 v12, 5, v0\nv_lshlrev_b32 v12, 4, v12\nv_lshl_add_u32 v12, v11, 12, v12\ns_mov_b32 s30, 0xffff0000")
    A("s_lshl_b32 s3, s23, 17\ns_lshl_b32 s4, s17, 11\ns_add_u32 s3, s3, s4\ns_lshl_b32 s4, s20, 8\ns_add_u32 s3, s3, s4\ns_lshl_b32 s4, s18, 6\ns_add_u32 s3, s3, s4")
    stamp()
    A("\n".join(chk("c", lst)))
    stamp()
    for i in range(24): A(f"v_lshlrev_b32 v{TMP+i}, 16, v{IN+i}\nv_and_b32 v{IN+i}, s30, v{IN+i}")
    for k in range(3):
        for i in range(8): A(f"v_add_f32 v{SUM+2*i}, v{SUM+2*i}, v{TMP+8*k+i}\nv_add_f32 v{SUM+2*i+1}, v{SUM+2*i+1}, v{IN+8*k+i}")
    for i in range(8): A(f"v_cvt_pk_bf16_f32 v{WF+i}, v{SUM+2*i}, v{SUM+2*i+1}")
    A(f"buffer_store_dwordx4 v[{WF}:{WF+3}], v12, s[12:15], s3 offen {osc}\nbuffer_store_dwordx4 v[{WF+4}:{WF+7}], v12, s[12:15], s3 offen offset:32 {osc}")
    if stamps or probe is not None: A("s_waitcnt vmcnt(0)")
    stamp()
    stamp_store(0)
    if probe is not None:
        if pwg >= 0: A(f"s_cmp_lg_u32 s2, {pwg}\ns_cbranch_scc1 L_end")
        if probe == -1: A("s_mov_b32 s62, s90")
        A("s_add_u32 s62, s62, 5000\nL_spin:\ns_sleep 4\ns_memrealtime s[64:65]\ns_waitcnt lgkmcnt(0)\ns_sub_u32 s64, s64, s62\ns_cmp_lt_i32 s64, 0\ns_cbranch_scc1 L_spin")
    A("L_end:\ns_endpgm")
    for r in retry: A(r)
    o.append(f'''.section .rodata,"a"
.p2align 6
.amdhsa_kernel {NAME}_kernel
  .amdhsa_next_free_vgpr 256
  .amdhsa_next_free_sgpr 102
  .amdhsa_accum_offset 256
  .amdhsa_group_segment_fixed_size 0
  .amdhsa_kernarg_size 104
  .amdhsa_user_sgpr_count 2
  .amdhsa_user_sgpr_kernarg_segment_ptr 1
  .amdhsa_system_sgpr_workgroup_id_x 1
.end_amdhsa_kernel''')
    return "\n".join(o) + "\n"

if __name__ == "__main__":
    kw = {}
    out = sys.argv[1]
    for a in sys.argv[2:]:
        k, v = a.split("=")
        kw[k] = int(v) if v.lstrip("-").isdigit() else v.replace('+', ' ')
    open(out, "w").write(gen(**kw))
```

```python
import sys, math
NAME = "concat_heads__gqa_block_cached__mha_block_cached__near_ridge"
HDR = open("cdna_kernels/%s.s.ref" % NAME).read().split("; @launch")[0]

def gen(D=1, tok=3, split=0, allhit=0, hk=0, D2=0, swp=0, PD=2, p1=3, pc=5, fu=17, tok2=3, slc=-1, sl=1, prl=0, prc=0, ntw="", ntx="", ntk="", ntv="", stamps=False, g1=4, g2=1, fi=0, ki=-1, vi=-1, fsc="sc1", psc="", noload=0, nocomp=0, tl=0, hack16=0, osc="", probe=None, pwg=-1):
    o = []
    role = [0]
    def A(s):
        for l in s.split("\n"):
            if noload and "offen" in l and l.strip().endswith("lds"): continue
            if nocomp & 1 and l.strip().startswith("v_mfma"): continue
            if nocomp & 2 and l.strip().startswith("ds_read") and "ds_read_b32" not in l: continue
            o.append("    " + l.strip() if not l.strip().endswith(":") else l.strip())
    S = 4; RB = 2048
    LDS = RB + S * 32768
    STAMP = 1 << 26
    nst = [0]
    def stamp():
        if probe is not None and role[0] == 0:
            if nst[0] == 0: A("s_memrealtime s[60:61]\ns_waitcnt lgkmcnt(0)\ns_mov_b32 s62, s60")
            elif nst[0] == probe: A("s_memrealtime s[62:63]\ns_waitcnt lgkmcnt(0)")
            nst[0] += 1
        if stamps:
            if nst[0] == 0: A("s_memtime s[96:97]")
            A(f"s_memrealtime s[{60+2*nst[0]}:{61+2*nst[0]}]\ns_memtime s[98:99]\ns_waitcnt lgkmcnt(0)")
            nst[0] += 1
    def stamp_store(role):
        if stamps:
            A(f"s_lshl_b32 s3, s2, 10\ns_lshl_b32 s4, s16, 7\ns_add_u32 s3, s3, s4\ns_add_u32 s3, s3, {STAMP}\nv_mov_b32 v1, 0")
            for i in range(nst[0]):
                A(f"v_mov_b32 v2, s{60+2*i}\nbuffer_store_dword v2, v1, s[44:47], s3 offen offset:{4*i}")
            A(f"s_sub_u32 s98, s98, s96\nv_mov_b32 v2, s98\nbuffer_store_dword v2, v1, s[44:47], s3 offen offset:120\nv_mov_b32 v2, {nst[0]}\nbuffer_store_dword v2, v1, s[44:47], s3 offen offset:124")
            A("v_mov_b32 v2, s90\nbuffer_store_dword v2, v1, s[44:47], s3 offen offset:116\ns_waitcnt vmcnt(0)")
    o.append(HDR + f"; @launch grid=(256,1,1) block=(512,1,1) lds={LDS}")
    o.append(f'.amdgcn_target "amdgcn-amd-amdhsa--gfx950"\n.text\n.globl {NAME}_kernel\n.p2align 8\n.type {NAME}_kernel,@function\n{NAME}_kernel:')
    if stamps or probe == -1: A("s_memrealtime s[90:91]")
    A("s_cmp_ge_u32 s2, 256\ns_cbranch_scc1 L_end")
    A("s_bfe_u32 s17, s2, 0x10002\ns_and_b32 s18, s2, 3\ns_lshr_b32 s19, s2, 6\ns_bfe_u32 s20, s2, 0x30003")
    A("s_mul_i32 s3, s17, 40\ns_add_u32 s4, s0, s3\ns_addc_u32 s5, s1, 0")
    A("s_load_dwordx8 s[24:31], s[4:5], 0\ns_load_dwordx2 s[32:33], s[4:5], 32\ns_load_dwordx4 s[36:39], s[0:1], 80\ns_load_dwordx2 s[44:45], s[0:1], 96")
    A("v_lshrrev_b32 v1, 6, v0\nv_and_b32 v0, 63, v0\nv_readfirstlane_b32 s16, v1")
    A("s_lshl_b32 s21, s17, 2\ns_add_u32 s21, s21, s19\ns_lshl_b32 s21, s21, 5")
    A("s_mov_b32 s92, 0x1000000\ns_mov_b32 s46, 0x10000000\ns_mov_b32 s47, 0x20000")
    def order2(r):
        seq = [0]
        for p in range(1, 8):
            seq.append(p + D2 if D2 and (p + D2) % 4 == r and p + D2 < 8 and p + D2 not in seq else min(x for x in range(8) if x not in seq))
        return seq
    for r in range(4):
        v = sum(t << (4*p) for p, t in enumerate(order2(r)))
        A(f"s_mov_b32 s101, {v:#x}" if r == 0 else f"s_cmp_eq_u32 s19, {r}\ns_cselect_b32 s101, {v:#x}, s101")
    A("v_lshlrev_b32 v13, 2, v0\nv_mov_b32 v12, 0\ns_cmp_ge_u32 s16, 4\ns_cbranch_scc0 L_compute")
    role[0] = 1
    if prl: A(f"s_setprio {prl}")
    A("s_and_b32 s22, s16, 3")
    A("v_cmp_eq_u32 vcc, 4, v0\nv_cndmask_b32 v12, v12, -3, vcc\nds_write_b32 v13, v12")
    A("s_lshl_b32 s23, s19, 2")
    A("s_lshl_b32 s34, s18, 3\ns_add_u32 s34, s34, s20")
    A("v_lshrrev_b32 v1, 3, v0\nv_lshrrev_b32 v2, 4, v0\nv_and_b32 v3, 7, v0\nv_xor_b32 v3, v3, v2\nv_lshlrev_b32 v3, 4, v3")
    A("v_xor_b32 v4, 64, v3")
    A("v_and_b32 v5, 15, v0\nv_lshlrev_b32 v6, 2, v2\nv_xor_b32 v6, v5, v6\nv_lshlrev_b32 v6, 4, v6")
    A("s_lshl_b32 s3, s23, 16")
    A("v_lshl_add_u32 v7, v1, 11, s3")
    for jj in range(4): A(f"v_add_u32 v{8+jj}, {jj*(16384-1024)}, v7\nv_add_u32 v{8+jj}, v{8+jj}, v{3+(jj&1)}")
    A("s_lshl_b32 s3, s34, 8\nv_lshl_add_u32 v7, v2, 13, s3\nv_add_u32 v7, v7, v6")
    for jj in range(4): A(f"v_add_u32 v{12+jj}, {jj*(32768-1024)}, v7")
    A("s_cmp_eq_u32 s17, 0\ns_cselect_b32 s35, 0, 8192\ns_cselect_b32 s14, 19, 22\ns_cselect_b32 s58, 15, 18\ns_cselect_b32 s59, 13, 16")
    A("s_lshl_b32 s89, 1, s58\ns_lshl_b32 s58, s23, s58\ns_lshl_b32 s59, s18, s59\ns_add_u32 s58, s58, s59")
    A("s_lshl_b32 s3, s18, 21\ns_lshl_b32 s59, s20, 8\ns_add_u32 s3, s3, s59\nv_lshl_add_u32 v7, v2, 11, s3\nv_add_u32 v7, v7, v6")
    for jj in range(4): A(f"v_add_u32 v{20+jj}, {jj*(8192-1024)}, v7")
    A("s_mul_i32 s59, s20, s35\ns_add_u32 s58, s58, s59\nv_lshl_add_u32 v7, v2, 8, s58\nv_xor_b32 v5, v5, v2\nv_lshlrev_b32 v5, 4, v5")
    for jj in range(4): A(f"v_xor_b32 v{24+jj}, {jj*64}, v5\nv_add_u32 v{24+jj}, v{24+jj}, v7")
    A("v_add_u32 v16, v7, v6")
    A("v_lshl_add_u32 v28, v0, 7, s58")
    def order(r):
        if allhit: return [0]*16
        if D < 0: return [p ^ (r & (g1-1)) for p in range(16)]
        seq = []
        for p in range(16):
            t = p + D if (p + D) % 4 == r and p + D < 16 and p + D not in seq else min(x for x in range(16) if x not in seq)
            seq.append(t)
        return seq
    A("s_add_u32 s3, s19, s20\ns_and_b32 s3, s3, 3")
    for r in range(4):
        v = sum(t << (4*p) for p, t in enumerate(order(r)))
        if r == 0: A(f"s_mov_b32 s40, {v & 0xffffffff:#x}\ns_mov_b32 s41, {v >> 32:#x}")
        else: A(f"s_cmp_eq_u32 s3, {r}\ns_cselect_b32 s40, {v & 0xffffffff:#x}, s40\ns_cselect_b32 s41, {v >> 32:#x}, s41")
    A(f"s_sub_u32 s3, s3, {max(D,0)}\ns_and_b32 s3, s3, {3 if D >= 0 else 0}\ns_cmp_eq_u32 s3, s22\ns_cselect_b32 s100, 0, 99")
    A("s_lshl_b32 s3, s22, 2\ns_lshr_b64 s[40:41], s[40:41], s3")
    A(f"s_lshl_b32 s57, s22, 15\ns_add_u32 s57, s57, {RB}")
    A("v_and_b32 v30, 3, v0\nv_lshlrev_b32 v30, 8, v30\nv_add_u32 v30, 256, v30\nv_cmp_lt_u32 vcc, 3, v0\nv_cndmask_b32 v30, v30, 16, vcc\nv_mov_b32 v31, s3\nv_mov_b32 v33, 16")
    A("s_waitcnt lgkmcnt(0)\ns_barrier\ns_mov_b32 s88, s29\ns_sub_u32 s29, s22, 3")
    A("s_mov_b32 s4, s24\ns_and_b32 s5, s25, 0xffff\ns_mov_b32 s6, 0x100000\ns_mov_b32 s7, 0x20000")
    A("s_mov_b32 s8, s30\ns_and_b32 s9, s31, 0xffff\ns_mov_b32 s10, 0x800000\ns_mov_b32 s11, 0x20000")
    A("s_lshl_b32 s14, 1, s14\ns_mov_b32 s12, s26\ns_and_b32 s13, s27, 0xffff\ns_mov_b32 s15, 0x20000")
    A("s_mov_b32 s48, s28\ns_and_b32 s49, s88, 0xffff\ns_mov_b32 s50, s14\ns_mov_b32 s51, 0x20000")
    A("s_mov_b32 s52, s32\ns_and_b32 s53, s33, 0xffff\ns_mov_b32 s54, 0x800000\ns_mov_b32 s55, 0x20000")
    nl = [0]
    def tls(i):
        if tl: A(f"s_memrealtime s[94:95]\ns_add_u32 s93, s29, 3\ns_lshr_b32 s93, s93, 2\ns_lshl_b32 s93, s93, 1\ns_add_u32 m0, s93, {i}\ns_waitcnt lgkmcnt(0)\nv_writelane_b32 v34, s94, m0")
    def pre():
        n = nl[0]; nl[0] += 1
        A(f"s_branch L_pe{n}\nL_pw{n}:\ns_sub_u32 s92, s92, 1\ns_cmp_lt_i32 s92, 0\ns_cbranch_scc1 L_px{n}\ns_sleep {sl}\nL_pe{n}:\nds_read_b32 v32, v30\ns_waitcnt lgkmcnt(0)\nv_cmp_gt_i32 vcc, s29, v32\ns_cbranch_vccnz L_pw{n}\nL_px{n}:")
        tls(0)
    def issue(srd, vb, so, step, fl, g0, x=0, vs=1, n=4, tok=tok):
        for g in range(g0, g0 + n):
            A(f"s_add_u32 m0, s57, {(g^x)*4096}")
            if g > g0: A(f"s_add_u32 {so}, {so}, {step[(g-g0-1) % len(step)]}")
            else: A("s_nop 0")
            for jj in range(4): A(f"buffer_load_dwordx4 v{vb+jj*vs}, {srd}, {so} offen offset:{jj*1024} {fl} lds")
            if g + 1 == tok: A("s_add_u32 s3, s29, 1\nv_mov_b32 v32, s3\nds_write_b32 v33, v32")
    def post(mid=None):
        A("s_add_u32 s3, s29, 4\nv_mov_b32 v35, s3\ns_waitcnt vmcnt(0)")
        if mid: A(mid)
        A("ds_write_b32 v31, v35")
        tls(1)
        A("s_add_u32 s29, s29, 4")
    stamp()
    A("L_l1:")
    pre()
    def fills(g0, n):
        A(f"s_add_u32 s3, s21, s34\ns_lshl_b32 s3, s3, 16\ns_add_u32 s3, s3, {g0*4096}\nv_lshlrev_b32 v36, 4, v0\ns_and_b32 s45, s45, 0xffff")
        for r in range(4): A(f"v_mov_b32 v{40+r}, -1")
        for g in range(n):
            for jj in range(4): A(f"buffer_store_dwordx4 v[40:43], v36, s[44:47], s3 offen offset:{jj*1024} {fsc}")
            if g < n - 1: A("s_add_u32 s3, s3, 4096")
    def touch(srd):
        A("s_mov_b32 s3, 0")
        for g in range(4): A(f"buffer_load_dword v29, v28, {srd}, s3 offen\ns_add_u32 s3, s3, s89")
    for it in range(1, 4):
        if it in (2, ki, vi):
            A(f"s_cmp_lg_u32 s100, {it}\ns_cbranch_scc1 L_x{it}")
            if it == 2: A("s_add_u32 s3, s21, s34\nv_mov_b32 v36, s3\nv_mov_b32 v37, 1\ns_mov_b64 exec, 1\ns_waitcnt vmcnt(0)\nglobal_store_byte v36, v37, s[38:39] sc1\ns_mov_b64 exec, -1")
            if it == ki: touch("s[12:15]")
            if it == vi: touch("s[48:51]")
            A(f"L_x{it}:")
    A("s_and_b32 s3, s40, 15\ns_lshr_b64 s[40:41], s[40:41], 16\ns_lshl_b32 s42, s3, 19\ns_lshl_b32 s43, s3, 7")
    issue("s[8:11]", 12, "s42", [1 << 17], ntw, 0)
    issue("s[4:7]", 8, "s43", [1 << 16], ntx, 4)
    A("s_add_u32 s100, s100, 1")
    for it, (g0, n) in enumerate(((0, 8), (8, 6))):
        A(f"s_cmp_lg_u32 s100, {it+1}\ns_cbranch_scc1 L_ns{it}")
        fills(g0, n)
        A(f"s_add_u32 s3, s29, 4\nv_mov_b32 v35, s3\ns_waitcnt vmcnt({4*n})\ns_branch L_nw\nL_ns{it}:")
    A("L_ns:")
    post("L_nw:")
    A("s_cmp_lt_i32 s29, 13\ns_cbranch_scc1 L_l1")
    stamp()
    A("s_cmp_gt_u32 s22, 1\ns_cbranch_scc1 L_l2\ns_sub_u32 s59, s89, 4096\ns_mov_b32 s42, 0\ns_cmp_eq_u32 s22, 1\ns_cbranch_scc1 L_lv")
    for u, srd, vb, vs, fl in ((16, "s[12:15]", 24, 1, ntk), (17, "s[48:51]", 16, 0, ntv)):
        pre()
        if u == fu: A("s_load_dwordx8 s[80:87], s[38:39], s21 glc")
        issue(srd, vb, "s42", [4096, "s59"], fl, 0, vs=vs, n=8)
        post("s_branch L_fchk\nL_fok:" if u == fu else None)
        if u == 16: A("s_branch L_l2\nL_lv:")
    A("L_l2:")
    pre()
    A("s_sub_u32 s3, s29, 15\ns_lshl_b32 s3, s3, 2\ns_lshr_b32 s42, s101, s3\ns_and_b32 s42, s42, 7\ns_xor_b32 s42, s42, s20\ns_lshl_b32 s42, s42, 18")
    issue("s[52:55]", 20, "s42", [1 << 15], ntw, 0, n=8, tok=tok2)
    post()
    A("s_cmp_lt_i32 s29, 23\ns_cbranch_scc1 L_l2")
    A("L_lend:")
    stamp()
    if stamps: A("s_and_b32 s45, s45, 0xffff")
    stamp_store(1)
    if tl: A(f"s_lshl_b32 s3, s2, 2\ns_add_u32 s3, s3, s22\ns_lshl_b32 s3, s3, 8\ns_add_u32 s3, s3, {STAMP + (1<<20)}\nv_lshlrev_b32 v1, 2, v0\nbuffer_store_dword v34, v1, s[44:47], s3 offen\ns_waitcnt vmcnt(0)")
    role[0] = 0
    A("s_endpgm")
    A("L_fchk:\ns_waitcnt lgkmcnt(0)")
    for i in range(0, 8, 4): A(f"s_and_b64 s[{80+i}:{81+i}], s[{80+i}:{81+i}], s[{82+i}:{83+i}]")
    A("s_and_b64 s[80:81], s[80:81], s[84:85]\ns_and_b32 s80, s80, s81\ns_cmp_eq_u32 s80, 0x01010101\ns_cbranch_scc1 L_fok")
    A("v_and_b32 v1, 7, v0\nv_lshl_add_u32 v1, v1, 2, s21\ns_mov_b32 s33, 0x40000\ns_mov_b32 s80, 0x01010101\nL_fp1:\nglobal_load_dword v2, v1, s[38:39] sc1\ns_waitcnt vmcnt(0)")
    A("v_cmp_ne_u32 vcc, s80, v2\ns_cbranch_vccz L_fok\ns_sub_u32 s33, s33, 1\ns_cbranch_scc1 L_fok\ns_sleep 8\ns_branch L_fp1")
    nst[0] = 0
    A("L_compute:")
    if prc: A(f"s_setprio {prc}")
    A("s_lshl_b32 s3, s16, 8\ns_add_u32 s3, s3, 256\nv_add_u32 v16, s3, v13\nds_write_b32 v16, v12")
    ACC, OUT, HELD, WF, XF, PF = 64, 128, 192, 16, 48, 56
    A("v_lshrrev_b32 v10, 5, v0\nv_bfe_u32 v11, v0, 2, 2\nv_bfe_u32 v12, v0, 4, 1\nv_and_b32 v13, 1, v0\nv_bfe_u32 v14, v0, 1, 1")
    A("v_lshl_add_u32 v15, v10, 3, v11\nv_lshlrev_b32 v15, 8, v15\nv_lshl_add_u32 v15, v11, 6, v15\nv_lshl_add_u32 v15, v12, 5, v15\nv_lshl_add_u32 v15, v13, 4, v15\nv_lshl_add_u32 v2, v14, 3, v15")
    A(f"v_add_u32 v2, {RB}, v2")
    for b in range(1, 4): A(f"v_xor_b32 v{2+b}, {b*64}, v2")
    A("v_and_b32 v11, 31, v0\nv_bfe_u32 v12, v0, 1, 3\nv_xor_b32 v12, v12, v10\nv_lshlrev_b32 v12, 4, v12\nv_lshl_add_u32 v12, v11, 7, v12")
    A(f"s_lshl_b32 s3, s16, 12\ns_add_u32 s3, s3, {16384+RB}\nv_add_u32 v6, s3, v12")
    for s in range(1, 4): A(f"v_xor_b32 v{6+s}, {s*32}, v6")
    A("v_lshlrev_b32 v1, 4, v0")
    for r in range(64): A(f"v_mov_b32 v{ACC+r}, 0")
    A("s_lshl_b32 s23, s19, 2\ns_add_u32 s23, s23, s16")
    A("s_waitcnt lgkmcnt(0)\ns_barrier")
    A("s_lshl_b32 s25, s18, 3\ns_add_u32 s25, s25, s21\ns_lshl_b32 s24, s25, 16\ns_lshl_b32 s3, s16, 13\ns_add_u32 s24, s24, s3\ns_add_u32 s25, s25, s20")
    A("s_lshl_b32 s34, s20, 16\ns_add_u32 s34, s34, s24")
    A("v_mov_b32 v13, v16\nv_mov_b32 v12, 0\nv_mov_b32 v11, 0")
    A("s_and_b32 s45, s45, 0xffff")
    A("s_mov_b32 s12, s36\ns_and_b32 s13, s37, 0xffff\ns_mov_b32 s14, 0x200000\ns_mov_b32 s15, 0x20000")
    A("s_mov_b32 s26, 0")
    def rd_w(s, b, buf):
        A(f"ds_read_b64_tr_b16 v[{WF+16*buf+4*b}:{WF+16*buf+4*b+1}], v{2+b} offset:{s*4096}")
        A(f"ds_read_b64_tr_b16 v[{WF+16*buf+4*b+2}:{WF+16*buf+4*b+3}], v{2+b} offset:{s*4096+1024}")
    def rd_x(s, buf): A(f"ds_read_b128 v[{XF+4*buf}:{XF+4*buf+3}], v{6+s}")
    def mf(ph, b, buf, first):
        w = f"v[{WF+16*buf+4*b}:{WF+16*buf+4*b+3}]"; x = f"v[{XF+4*buf}:{XF+4*buf+3}]"; a = f"v[{ACC+16*b}:{ACC+16*b+15}]"
        c = "0" if first else a
        if hack16:
            for h in range(2):
                r0 = ACC+16*b+8*buf+4*h
                xx = f"v[{XF+4*(buf^h)}:{XF+4*(buf^h)+3}]"
                A(f"v_mfma_f32_16x16x32_bf16 v[{r0}:{r0+3}], {w}, {xx}, v[{r0}:{r0+3}]")
            return
        A(f"v_mfma_f32_32x32x16_bf16 {a}, {w}, {x}, {c}" if ph == 1 else f"v_mfma_f32_32x32x16_bf16 {a}, {x}, {w}, {c}")
    retry = []
    nw = [0]
    def adv(): A(f"s_add_u32 s26, s26, 1\ns_cmp_eq_u32 s26, {S}\ns_cselect_b32 s26, 0, s26\ns_cselect_b32 s27, {-(S-1)*32768 & 0xffffffff}, s28\nv_add_u32 v12, 1, v12\nv_lshlrev_b32 v11, 2, s26")
    def sig(): A("ds_write_b32 v13, v12\nds_read_b32 v10, v11")
    def rdy():
        n = nw[0]; nw[0] += 1
        A(f"L_rc{n}:\ns_waitcnt lgkmcnt(0)\nv_cmp_le_u32 vcc, v10, v12\ns_cbranch_vccnz L_rw{n}\nL_rx{n}:")
        retry.append(f"L_rw{n}:\ns_sub_u32 s92, s92, 1\ns_cmp_lt_i32 s92, 0\ns_cbranch_scc1 L_rx{n}\n{'' if slc < 0 else 's_sleep %d' % slc}\nds_read_b32 v10, v11\ns_branch L_rc{n}")
    def tile(ph, first=False, extra=None, tail=None):
        extra = extra or {}
        for s in range(3):
            buf = s & 1
            for b in range(4):
                A(f"s_waitcnt lgkmcnt({6 if b == 0 else 7})")
                mf(ph, b, buf, first and s == 0)
                if b == 0: rd_x(s+1, buf ^ 1)
                rd_w(s+1, b, buf ^ 1)
                if (s, b) in extra: A(extra[(s, b)])
                if s == 2 and b == 0: adv()
        if tail == "last":
            for b in range(4): A(f"s_waitcnt lgkmcnt({6-2*b})"); mf(ph, b, 1, False)
            return
        sig()
        A("s_waitcnt lgkmcnt(8)"); mf(ph, 0, 1, False)
        for r in range(2, 6): A(f"v_add_u32 v{r}, s27, v{r}")
        A("s_waitcnt lgkmcnt(6)"); mf(ph, 1, 1, False)
        for r in range(6, 10): A(f"v_add_u32 v{r}, s27, v{r}")
        rdy()
        if tail == "k":
            mf(ph, 2, 1, False)
            for ks in range(8):
                A(f"v_xor_b32 v15, {ks*32}, v14\nds_read_b128 v[{OUT+4*ks}:{OUT+4*ks+3}], v15")
                if ks == 3: mf(ph, 3, 1, False)
            adv(); sig()
            for r in range(2, 10): A(f"v_add_u32 v{r}, s27, v{r}")
            return
        rd_x(0, 0); rd_w(0, 0, 0)
        mf(ph, 2, 1, False)
        rd_w(0, 1, 0); rd_w(0, 2, 0)
        mf(ph, 3, 1, False)
        rd_w(0, 3, 0)
    A("s_mov_b32 s28, 32768")
    A(f"v_and_b32 v15, 31, v0\nv_and_b32 v14, 15, v0\nv_lshrrev_b32 v10, 5, v0\nv_xor_b32 v14, v14, v10\nv_lshlrev_b32 v14, 4, v14\nv_lshl_add_u32 v14, v15, 8, v14")
    A(f"s_lshl_b32 s3, s16, 13\ns_add_u32 s3, s3, {RB}\nv_add_u32 v14, s3, v14\nv_mov_b32 v10, 0")
    stamp()
    rdy()
    stamp()
    rd_x(0, 0)
    for b in range(4): rd_w(0, b, 0)
    if split:
        A(f"s_mov_b32 s29, {split}\nL_p0:")
        tile(1)
        A("s_sub_u32 s29, s29, 1\ns_cmp_lg_u32 s29, 0\ns_cbranch_scc1 L_p0")
        stamp()
    A(f"s_mov_b32 s29, {15-split}\nL_p1:")
    tile(1)
    A("s_sub_u32 s29, s29, 1\ns_cmp_lg_u32 s29, 0\ns_cbranch_scc1 L_p1")
    tile(1, tail="k")
    stamp()
    KF, SA, VF = 128, 160, 224
    OB = [128, 160, 192, 224]
    for i in range(32): A(f"v_cvt_pk_bf16_f32 v{HELD+i}, v{ACC+2*i}, v{ACC+2*i+1}")
    A("s_waitcnt lgkmcnt(0)\ns_lshl_b32 s3, s16, 13\nv_lshrrev_b32 v15, 5, v0\nv_lshlrev_b32 v15, 10, v15\nv_sub_u32 v15, s3, v15")
    for ks in range(8):
        A(f"v_mfma_f32_32x32x16_bf16 v[{SA}:{SA+15}], v[{KF+4*ks}:{KF+4*ks+3}], v[{HELD+4*ks}:{HELD+4*ks+3}], " + ("0" if ks == 0 else f"v[{SA}:{SA+15}]"))
        if ks < 4: A(f"v_add_u32 v{6+ks}, v{2+ks}, v15")
    rdy()
    for b in range(4):
        for s in range(2):
            for h in range(2): A(f"ds_read_b64_tr_b16 v[{VF+8*b+4*s+2*h}:{VF+8*b+4*s+2*h+1}], v{6+b} offset:{s*4096+h*2048}")
    adv(); sig()
    for r in range(2, 6): A(f"v_add_u32 v{r}, s27, v{r}")
    import struct
    c = struct.unpack("<I", struct.pack("<f", math.log2(math.e) / math.sqrt(128.0)))[0]
    A(f"s_mov_b32 s30, {c:#x}\ns_add_u32 s3, s34, 4096")
    A(f"v_max3_f32 v14, v{SA}, v{SA+1}, v{SA+2}")
    for r in range(3, 15, 2): A(f"v_max3_f32 v14, v14, v{SA+r}, v{SA+r+1}")
    A(f"v_max_f32 v14, v14, v{SA+15}\nv_mov_b32 v15, v14\ns_nop 1\nv_permlane32_swap_b32 v14, v15\ns_nop 1\nv_max_f32 v14, v14, v15\nv_mul_f32 v14, s30, v14")
    for r in range(16): A(f"v_fma_f32 v{SA+r}, v{SA+r}, s30, -v14")
    for r in range(16): A(f"v_exp_f32 v{SA+r}, v{SA+r}")
    A(f"s_nop 0\nv_add_f32 v14, v{SA}, v{SA+1}\nv_add_f32 v15, v{SA+2}, v{SA+3}")
    for r in range(4, 16, 2): A(f"v_add_f32 v14, v14, v{SA+r}\nv_add_f32 v15, v15, v{SA+r+1}")
    A("v_add_f32 v14, v14, v15\nv_mov_b32 v15, v14\ns_nop 1\nv_permlane32_swap_b32 v14, v15\ns_nop 1\nv_add_f32 v14, v14, v15\nv_rcp_f32 v14, v14\ns_nop 0")
    for r in range(16): A(f"v_mul_f32 v{SA+r}, v{SA+r}, v14")
    for i in range(8): A(f"v_cvt_pk_bf16_f32 v{PF+i}, v{SA+2*i}, v{SA+2*i+1}")
    A("s_waitcnt lgkmcnt(0)\ns_nop 0")
    def ocv(b):
        for i in range(8): A(f"v_cvt_pk_bf16_f32 v{OB[0]+8*b+i}, v{ACC+16*b+2*i}, v{ACC+16*b+2*i+1}")
        for s in range(2): A(f"buffer_store_dwordx4 v[{OB[0]+8*b+4*s}:{OB[0]+8*b+4*s+3}], v1, s[44:47], {'s3' if b > 1 else 's34'} offen offset:{(2*b+s)%4*1024}")
    for b in range(4):
        for s in range(2): A(f"v_mfma_f32_32x32x16_bf16 v[{ACC+16*b}:{ACC+16*b+15}], v[{VF+8*b+4*s}:{VF+8*b+4*s+3}], v[{PF+4*s}:{PF+4*s+3}], " + (f"v[{ACC+16*b}:{ACC+16*b+15}]" if s else "0"))
        if b >= 2: ocv(b - 2)
    ocv(2); ocv(3)
    rdy()
    for b in range(4): rd_w(0, b, 0)
    stamp()
    def ldn(p, so, fl, n, off=0): return "\n".join(f"buffer_load_dwordx4 v[{p+4*i}:{p+4*i+3}], v1, s[44:47], {so} offen offset:{off+1024*i} {fl}" for i in range(n))
    def olst(i): return [(OB[i % 4], f"s{4+2*(i%4)}", 4), (OB[i % 4] + 16, f"s{5+2*(i%4)}", 4)]
    def oload(i):
        so = 4 + 2*(i % 4)
        return f"s_lshr_b32 s101, s101, 4\ns_and_b32 s{so}, s101, 7\ns_xor_b32 s{so}, s{so}, s20\ns_lshl_b32 s{so}, s{so}, 16\ns_add_u32 s{so}, s{so}, s24\ns_add_u32 s{so+1}, s{so}, 4096\n" + "\n".join(ldn(p, s, psc, n) for p, s, n in olst(i))
    def mx(regs):
        r = [f"v_max3_u32 v14, v{regs[0]}, v{regs[1]}, v{regs[2]}"]
        for i in range(3, len(regs) - 1, 2): r.append(f"v_max3_u32 v14, v14, v{regs[i]}, v{regs[i+1]}")
        r.append(f"v_max_u32 v14, v14, v{regs[-1]}\nv_cmp_eq_u32 vcc, -1, v14")
        return r
    def chk(name, lst, cnt=0):
        m = mx([p+i for p, _, n in lst for i in range(4*n)])
        retry.append(f"L_rt{name}:\ns_sub_u32 s33, s33, 1\ns_cmp_lt_i32 s33, 0\ns_cbranch_scc1 L_ok{name}\n" + "\n".join(ldn(p, so, "sc1", n) for p, so, n in lst)
                     + "\ns_waitcnt vmcnt(0)\n" + "\n".join(m) + f"\ns_cbranch_vccnz L_rt{name}\ns_branch L_ok{name}")
        return [f"s_waitcnt vmcnt({cnt})"] + m + [f"s_cbranch_vccnz L_rt{name}\nL_ok{name}:"]
    def mf2(i, s, b):
        a = f"v[{ACC+16*b}:{ACC+16*b+15}]"; x = OB[i % 4] + 4*s; w = WF + 16*(s & 1) + 4*b
        A(f"v_mfma_f32_32x32x16_bf16 {a}, v[{w}:{w+3}], v[{x}:{x+3}], " + ("0" if i == 0 and s == 0 else a))
    A("s_mov_b32 s33, 0x40000")
    for i in range(8):
        ex = {}
        if i == 0:
            for k in range(1, PD + 1): ex[(p1, k)] = oload(k)
        elif i + PD < 8: ex[(0, 1)] = oload(i + PD)
        if i < 7:
            ck = chk(f"o{i}", olst(i + 1), 8*(min(i + PD, 7) - i - 1))
            q = 6 if i == 0 else pc
            for k in range(4): ex[(q, k)] = "\n".join(ck[[0, 5, 9, 13][k]:[5, 9, 13, 99][k]])
        for s in range(7):
            for b in range(4):
                A("s_waitcnt lgkmcnt(6)"); mf2(i, s, b); rd_w(s+1, b, (s & 1) ^ 1)
                if (s, b) in ex: A(ex[(s, b)])
                if s == 6 and b == 0 and i < 7: adv()
        if i == 7:
            for b in range(4): A(f"s_waitcnt lgkmcnt({6-2*b})"); mf2(i, 7, b)
            break
        sig()
        A("s_waitcnt lgkmcnt(8)"); mf2(i, 7, 0)
        for r in range(2, 6): A(f"v_add_u32 v{r}, s27, v{r}")
        A("s_waitcnt lgkmcnt(6)"); mf2(i, 7, 1)
        rdy()
        rd_w(0, 0, 0); mf2(i, 7, 2); rd_w(0, 1, 0); rd_w(0, 2, 0); mf2(i, 7, 3); rd_w(0, 3, 0)
        if i in (1, 2): stamp()
    stamp()
    OUT, SUM, IN, TMP = ACC, 128, 144, 168
    A("s_lshl_b32 s3, s16, 11\ns_sub_u32 s6, s34, s3\ns_add_u32 s6, s6, 32768\ns_add_u32 s7, s6, 4096\ns_lshl_b32 s4, s18, 19\ns_sub_u32 s5, s6, s4\ns_sub_u32 s5, s5, 2048")
    for b in range(4):
        A(f"s_cmp_eq_u32 s18, {b}\ns_cbranch_scc1 L_own{b}")
        A(f"s_sub_u32 s3, s18, {b}\ns_and_b32 s3, s3, 3\ns_lshl_b32 s3, s3, 11\ns_add_u32 s3, s3, s5")
        for i in range(8): A(f"v_cvt_pk_bf16_f32 v{HELD+8*b+i}, v{OUT+16*b+2*i}, v{OUT+16*b+2*i+1}")
        for i in range(2): A(f"buffer_store_dwordx4 v[{HELD+8*b+4*i}:{HELD+8*b+4*i+3}], v1, s[44:47], s3 offen offset:{1024*i} sc1")
        A(f"s_branch L_nxt{b}\nL_own{b}:")
        for r in range(16): A(f"v_mov_b32 v{SUM+r}, v{OUT+16*b+r}")
        A(f"L_nxt{b}:\ns_add_u32 s5, s5, {1<<19}")
    lst = [(IN, "s6", 4), (IN+16, "s7", 2)]
    for p, so, n in lst: A(ldn(p, so, "sc1", n))
    A("v_and_b32 v11, 31, v0\nv_lshrrev_b32 v12, 5, v0\nv_lshlrev_b32 v12, 4, v12\nv_lshl_add_u32 v12, v11, 12, v12\ns_mov_b32 s30, 0xffff0000")
    A("s_lshl_b32 s3, s23, 17\ns_lshl_b32 s4, s17, 11\ns_add_u32 s3, s3, s4\ns_lshl_b32 s4, s20, 8\ns_add_u32 s3, s3, s4\ns_lshl_b32 s4, s18, 6\ns_add_u32 s3, s3, s4")
    stamp()
    A("\n".join(chk("c", lst)))
    stamp()
    for i in range(24): A(f"v_lshlrev_b32 v{TMP+i}, 16, v{IN+i}\nv_and_b32 v{IN+i}, s30, v{IN+i}")
    for k in range(3):
        for i in range(8): A(f"v_add_f32 v{SUM+2*i}, v{SUM+2*i}, v{TMP+8*k+i}\nv_add_f32 v{SUM+2*i+1}, v{SUM+2*i+1}, v{IN+8*k+i}")
    for i in range(8): A(f"v_cvt_pk_bf16_f32 v{WF+i}, v{SUM+2*i}, v{SUM+2*i+1}")
    A(f"buffer_store_dwordx4 v[{WF}:{WF+3}], v12, s[12:15], s3 offen {osc}\nbuffer_store_dwordx4 v[{WF+4}:{WF+7}], v12, s[12:15], s3 offen offset:32 {osc}")
    if stamps or probe is not None: A("s_waitcnt vmcnt(0)")
    stamp()
    stamp_store(0)
    if probe is not None:
        if pwg >= 0: A(f"s_cmp_lg_u32 s2, {pwg}\ns_cbranch_scc1 L_end")
        if probe == -1: A("s_mov_b32 s62, s90")
        A("s_add_u32 s62, s62, 5000\nL_spin:\ns_sleep 4\ns_memrealtime s[64:65]\ns_waitcnt lgkmcnt(0)\ns_sub_u32 s64, s64, s62\ns_cmp_lt_i32 s64, 0\ns_cbranch_scc1 L_spin")
    A("L_end:\ns_endpgm")
    for r in retry: A(r)
    o.append(f'''.section .rodata,"a"
.p2align 6
.amdhsa_kernel {NAME}_kernel
  .amdhsa_next_free_vgpr 256
  .amdhsa_next_free_sgpr 102
  .amdhsa_accum_offset 256
  .amdhsa_group_segment_fixed_size 0
  .amdhsa_kernarg_size 104
  .amdhsa_user_sgpr_count 2
  .amdhsa_user_sgpr_kernarg_segment_ptr 1
  .amdhsa_system_sgpr_workgroup_id_x 1
.end_amdhsa_kernel''')
    return "\n".join(o) + "\n"

if __name__ == "__main__":
    kw = {}
    out = sys.argv[1]
    for a in sys.argv[2:]:
        k, v = a.split("=")
        kw[k] = int(v) if v.lstrip("-").isdigit() else v.replace('+', ' ')
    open(out, "w").write(gen(**kw))
```

```python
import sys, math
NAME = "concat_heads__gqa_block_cached__mha_block_cached__near_ridge"
HDR = open("cdna_kernels/%s.s.ref" % NAME).read().split("; @launch")[0]

def gen(D=1, tok=3, split=0, allhit=0, hk=0, D2=1, swp=0, PD=2, p1=3, pc=5, fo=1, po=0, o2='', wb=0, fx=0, nat=0, tw='', xs=0, xr=0, iu=0, c2=23, fl=2, fs='86', fso='sc1', cu=14, gl='glc', tok2=3, slc=-1, sl=1, prl=0, prc=0, ntw="", ntx="", ntk="", ntv="", stamps=False, g1=4, g2=1, fi=0, ki=-1, vi=-1, fsc="sc1", psc="", noload=0, nocomp=0, tl=0, hack16=0, osc="", probe=None, pwg=-1):
    o = []
    role = [0]
    def A(s):
        for l in s.split("\n"):
            if noload and "offen" in l and l.strip().endswith("lds"): continue
            if nocomp & 1 and l.strip().startswith("v_mfma"): continue
            if nocomp & 2 and l.strip().startswith("ds_read") and "ds_read_b32" not in l: continue
            o.append("    " + l.strip() if not l.strip().endswith(":") else l.strip())
    S = 4; RB = 2048
    STG = RB + S * 32768; LDS = STG + 16384
    STAMP = 1 << 26
    nst = [0]
    def stamp():
        if probe is not None and role[0] == 0:
            if nst[0] == 0: A("s_memrealtime s[60:61]\ns_waitcnt lgkmcnt(0)\ns_mov_b32 s62, s60")
            elif nst[0] == probe: A("s_memrealtime s[62:63]\ns_waitcnt lgkmcnt(0)")
            nst[0] += 1
        if stamps:
            if nst[0] == 0: A("s_memtime s[96:97]")
            A(f"s_memrealtime s[{60+2*nst[0]}:{61+2*nst[0]}]\ns_memtime s[98:99]\ns_waitcnt lgkmcnt(0)")
            nst[0] += 1
    def stamp_store(role):
        if stamps:
            A(f"s_lshl_b32 s3, s2, 10\ns_lshl_b32 s4, s16, 7\ns_add_u32 s3, s3, s4\ns_add_u32 s3, s3, {STAMP}\nv_mov_b32 v1, 0")
            for i in range(nst[0]):
                A(f"v_mov_b32 v2, s{60+2*i}\nbuffer_store_dword v2, v1, s[44:47], s3 offen offset:{4*i}")
            A(f"s_sub_u32 s98, s98, s96\nv_mov_b32 v2, s98\nbuffer_store_dword v2, v1, s[44:47], s3 offen offset:120\nv_mov_b32 v2, {nst[0]}\nbuffer_store_dword v2, v1, s[44:47], s3 offen offset:124")
            A("v_mov_b32 v2, s90\nbuffer_store_dword v2, v1, s[44:47], s3 offen offset:116\ns_waitcnt vmcnt(0)")
    o.append(HDR + f"; @launch grid=(256,1,1) block=(512,1,1) lds={LDS}")
    o.append(f'.amdgcn_target "amdgcn-amd-amdhsa--gfx950"\n.text\n.globl {NAME}_kernel\n.p2align 8\n.type {NAME}_kernel,@function\n{NAME}_kernel:')
    if stamps or probe == -1: A("s_memrealtime s[90:91]")
    A("s_cmp_ge_u32 s2, 256\ns_cbranch_scc1 L_end")
    A("s_bfe_u32 s17, s2, 0x10002\ns_and_b32 s18, s2, 3\ns_lshr_b32 s19, s2, 6\ns_bfe_u32 s20, s2, 0x30003")
    A("s_mul_i32 s3, s17, 40\ns_add_u32 s4, s0, s3\ns_addc_u32 s5, s1, 0")
    A("s_load_dwordx8 s[24:31], s[4:5], 0\ns_load_dwordx2 s[32:33], s[4:5], 32\ns_load_dwordx4 s[36:39], s[0:1], 80\ns_load_dwordx2 s[44:45], s[0:1], 96")
    A("v_lshrrev_b32 v1, 6, v0\nv_and_b32 v0, 63, v0\nv_readfirstlane_b32 s16, v1")
    A("s_lshl_b32 s21, s17, 2\ns_add_u32 s21, s21, s19\ns_lshl_b32 s21, s21, 5")
    A("s_mov_b32 s92, 0x1000000\ns_mov_b32 s46, 0x10000000\ns_mov_b32 s47, 0x20000")
    def order2(r):
        seq = [0]
        for p in range(1, 8):
            seq.append(p + D2 if D2 and (p + D2) % 4 == r and p + D2 < 8 and p + D2 not in seq else min(x for x in range(8) if x not in seq))
        return seq
    for r in range(4):
        v = sum(t << (4*p) for p, t in enumerate(order2(r)))
        A(f"s_mov_b32 s101, {v:#x}" if r == 0 else f"s_cmp_eq_u32 s19, {r}\ns_cselect_b32 s101, {v:#x}, s101")
    A("v_lshlrev_b32 v13, 2, v0\nv_mov_b32 v12, 0\ns_cmp_ge_u32 s16, 4\ns_cbranch_scc0 L_compute")
    role[0] = 1
    if prl: A(f"s_setprio {prl}")
    A("s_and_b32 s22, s16, 3")
    A("v_cmp_eq_u32 vcc, 4, v0\nv_cndmask_b32 v12, v12, -3, vcc\nds_write_b32 v13, v12")
    A("s_lshl_b32 s23, s19, 2")
    A("s_lshl_b32 s34, s18, 3\ns_add_u32 s34, s34, s20")
    A("v_lshrrev_b32 v1, 3, v0\nv_lshrrev_b32 v2, 4, v0\nv_and_b32 v3, 7, v0\nv_xor_b32 v3, v3, v2\nv_lshlrev_b32 v3, 4, v3")
    A("v_xor_b32 v4, 64, v3")
    A("v_and_b32 v5, 15, v0\nv_lshlrev_b32 v6, 2, v2\nv_xor_b32 v6, v5, v6\nv_lshlrev_b32 v6, 4, v6")
    A("s_lshl_b32 s3, s23, 16")
    A("v_lshl_add_u32 v7, v1, 11, s3")
    for jj in range(4): A(f"v_add_u32 v{8+jj}, {jj*(16384-1024)}, v7\nv_add_u32 v{8+jj}, v{8+jj}, v{3+(jj&1)}")
    A("s_lshl_b32 s3, s34, 8\nv_lshl_add_u32 v7, v2, 13, s3\nv_add_u32 v7, v7, v6")
    for jj in range(4): A(f"v_add_u32 v{12+jj}, {jj*(32768-1024)}, v7")
    A("s_cmp_eq_u32 s17, 0\ns_cselect_b32 s35, 0, 8192\ns_cselect_b32 s14, 19, 22\ns_cselect_b32 s58, 15, 18\ns_cselect_b32 s59, 13, 16")
    A("s_lshl_b32 s89, 1, s58\ns_lshl_b32 s58, s23, s58\ns_lshl_b32 s59, s18, s59\ns_add_u32 s58, s58, s59")
    A("s_lshl_b32 s3, s18, 21\ns_lshl_b32 s59, s20, 8\ns_add_u32 s3, s3, s59\nv_lshl_add_u32 v7, v2, 11, s3\nv_add_u32 v7, v7, v6")
    for jj in range(4): A(f"v_add_u32 v{20+jj}, {jj*(8192-1024)}, v7")
    A("s_mul_i32 s59, s20, s35\ns_add_u32 s58, s58, s59\nv_lshl_add_u32 v7, v2, 8, s58\nv_lshl_add_u32 v5, v1, 8, s58")
    for jj in range(4): A(f"v_add_u32 v{24+jj}, {jj*1024}, v5\nv_add_u32 v{24+jj}, v{24+jj}, v{3+(jj&1)}")
    A("v_add_u32 v16, v7, v6")
    A("v_lshl_add_u32 v28, v0, 7, s58")
    A("s_lshl_b32 s3, s34, 8\nv_lshl_add_u32 v44, v0, 13, s3\ns_lshl_b32 s3, s23, 16\ns_lshr_b32 s42, s20, 2\ns_lshl_b32 s42, s42, 17\ns_add_u32 s3, s3, s42\nv_lshl_add_u32 v45, v0, 11, s3")
    A("s_lshl_b32 s3, s18, 21\ns_lshl_b32 s42, s20, 8\ns_add_u32 s3, s3, s42\nv_lshl_add_u32 v46, v0, 11, s3")
    def order(r):
        if allhit: return [0]*16
        if nat: return list(range(16))
        if D < 0: return [p ^ (r & (g1-1)) for p in range(16)]
        seq = []
        for p in range(16):
            t = p + D if (p + D) % 4 == r and p + D < 16 and p + D not in seq else min(x for x in range(16) if x not in seq)
            seq.append(t)
        return seq
    A("s_add_u32 s3, s19, s20\ns_and_b32 s3, s3, 3")
    for r in range(4):
        v = sum(t << (4*p) for p, t in enumerate(order(r)))
        if r == 0: A(f"s_mov_b32 s40, {v & 0xffffffff:#x}\ns_mov_b32 s41, {v >> 32:#x}")
        else: A(f"s_cmp_eq_u32 s3, {r}\ns_cselect_b32 s40, {v & 0xffffffff:#x}, s40\ns_cselect_b32 s41, {v >> 32:#x}, s41")
    A(f"s_sub_u32 s3, s3, {max(D,0)}\ns_and_b32 s3, s3, {3 if D >= 0 else 0}\ns_add_u32 s100, s3, {fo}\ns_and_b32 s100, s100, 3\ns_cmp_eq_u32 s100, s22\ns_cselect_b32 s100, 0, 99\ns_add_u32 s56, s3, {po}\ns_and_b32 s56, s56, 3\ns_cmp_eq_u32 s56, s22\ns_cselect_b32 s56, 0, 99")
    A("s_lshl_b32 s3, s22, 2\ns_lshr_b64 s[40:41], s[40:41], s3")
    A(f"s_lshl_b32 s57, s22, 15\ns_add_u32 s57, s57, {RB}")
    A("v_and_b32 v30, 3, v0\nv_lshlrev_b32 v30, 8, v30\nv_add_u32 v30, 256, v30\nv_cmp_lt_u32 vcc, 3, v0\nv_cndmask_b32 v30, v30, 16, vcc\nv_mov_b32 v31, s3\nv_mov_b32 v33, 16")
    A("s_waitcnt lgkmcnt(0)\ns_barrier\ns_mov_b32 s88, s29\ns_sub_u32 s29, s22, 3")
    A("s_mov_b32 s4, s24\ns_and_b32 s5, s25, 0xffff\ns_mov_b32 s6, 0x100000\ns_mov_b32 s7, 0x20000")
    A("s_mov_b32 s8, s30\ns_and_b32 s9, s31, 0xffff\ns_mov_b32 s10, 0x800000\ns_mov_b32 s11, 0x20000")
    A("s_lshl_b32 s14, 1, s14\ns_mov_b32 s12, s26\ns_and_b32 s13, s27, 0xffff\ns_mov_b32 s15, 0x20000")
    A("s_mov_b32 s48, s28\ns_and_b32 s49, s88, 0xffff\ns_mov_b32 s50, s14\ns_mov_b32 s51, 0x20000")
    A("s_mov_b32 s52, s32\ns_and_b32 s53, s33, 0xffff\ns_mov_b32 s54, 0x800000\ns_mov_b32 s55, 0x20000")
    nl = [0]
    def tls(i):
        if tl: A(f"s_memrealtime s[94:95]\ns_add_u32 s93, s29, 3\ns_lshr_b32 s93, s93, 2\ns_lshl_b32 s93, s93, 1\ns_add_u32 m0, s93, {i}\ns_waitcnt lgkmcnt(0)\nv_writelane_b32 v34, s94, m0")
    def pre():
        n = nl[0]; nl[0] += 1
        A(f"s_branch L_pe{n}\nL_pw{n}:\ns_sub_u32 s92, s92, 1\ns_cmp_lt_i32 s92, 0\ns_cbranch_scc1 L_px{n}\ns_sleep {sl}\nL_pe{n}:\nds_read_b32 v32, v30\ns_waitcnt lgkmcnt(0)\nv_cmp_gt_i32 vcc, s29, v32\ns_cbranch_vccnz L_pw{n}\nL_px{n}:")
        tls(0)
    def issue(srd, vb, so, step, fl, g0, x=0, vs=1, n=4, tok=tok, mb=None):
        for g in range(g0, g0 + n):
            A(f"s_add_u32 m0, s57, {(g^x)*4096}" if mb is None else f"s_mov_b32 m0, {mb+g*4096}")
            if g > g0: A(f"s_add_u32 {so}, {so}, {step[(g-g0-1) % len(step)]}")
            else: A("s_nop 0")
            for jj in range(4): A(f"buffer_load_dwordx4 v{vb+jj*vs}, {srd}, {so} offen offset:{jj*1024} {fl} lds")
            if g + 1 == tok: A("s_add_u32 s3, s29, 1\nv_mov_b32 v32, s3\nds_write_b32 v33, v32")
    def post(mid=None):
        A("s_add_u32 s3, s29, 4\nv_mov_b32 v35, s3\ns_waitcnt vmcnt(0)")
        if mid: A(mid)
        A("ds_write_b32 v31, v35")
        tls(1)
        A("s_add_u32 s29, s29, 4")
    stamp()
    A("L_l1:")
    pre()
    def fills(g0, n):
        A(f"s_add_u32 s3, s21, s34\ns_lshl_b32 s3, s3, 16\ns_add_u32 s3, s3, {g0*4096}\nv_lshlrev_b32 v36, 4, v0\ns_and_b32 s45, s45, 0xffff")
        for r in range(4): A(f"v_mov_b32 v{40+r}, -1")
        for g in range(n):
            for jj in range(4): A(f"buffer_store_dwordx4 v[40:43], v36, s[44:47], s3 offen offset:{jj*1024} {fsc if g0+g >= 8 else fso}")
            if g < n - 1: A("s_add_u32 s3, s3, 4096")
    def touch(srd):
        A("s_mov_b32 s3, 0")
        for g in range(4): A(f"buffer_load_dword v29, v28, {srd}, s3 offen\ns_add_u32 s3, s3, s89")
    for it in range(1, 4):
        if it in (fl, ki, vi):
            A(f"s_cmp_lg_u32 s100, {it}\ns_cbranch_scc1 L_x{it}")
            if it == fl: A("s_add_u32 s3, s21, s34\nv_mov_b32 v36, s3\ns_getreg_b32 s3, hwreg(HW_REG_XCC_ID, 0, 4)\ns_or_b32 s3, s3, 16\nv_mov_b32 v37, s3\ns_mov_b64 exec, 1\ns_waitcnt vmcnt(0)\nglobal_store_byte v36, v37, s[38:39] sc1\ns_mov_b64 exec, -1")
            if it == ki: touch("s[12:15]")
            if it == vi: touch("s[48:51]")
            A(f"L_x{it}:")
    A(f"s_cmp_lg_u32 s29, {cu-3}\ns_cbranch_scc1 L_nfl\ns_load_dwordx8 s[80:87], s[38:39], s21 {gl}\nL_nfl:")
    A(f"s_mul_i32 s3, s20, {xs}\ns_mul_i32 s42, s19, {xr}\ns_add_u32 s3, s3, s42\ns_add_u32 s3, s3, s40\ns_and_b32 s3, s3, 15\ns_lshr_b64 s[40:41], s[40:41], 16\ns_lshl_b32 s42, s3, 19\ns_lshl_b32 s43, s3, 7")
    issue("s[8:11]", 12, "s42", [1 << 17], ntw, 0)
    issue("s[4:7]", 8, "s43", [1 << 16], ntx, 4)
    A("s_cmp_gt_u32 s56, 3\ns_cbranch_scc1 L_np\ns_and_b32 s3, s56, 1\ns_cmp_gt_u32 s56, 1\ns_cbranch_scc1 L_pv\ns_lshl_b32 s42, s3, 7")
    issue("s[12:15]", 24, "s42", ["s89"], ntk, 0, tok=-1, mb=STG)
    A("s_branch L_pd\nL_pv:\ns_lshl_b32 s42, s3, 12")
    issue("s[48:51]", 16, "s42", ["s89"], ntv, 0, vs=0, tok=-1, mb=STG)
    A("L_pd:\ns_add_u32 s56, s56, 1")
    for k, spec in enumerate(tw.split(".") if tw else []):
        if not spec: continue
        A(f"s_cmp_lg_u32 s56, {k+1}\ns_cbranch_scc1 L_t{k}")
        n = 0
        for ch in spec:
            if ch in "123":
                A(f"s_add_u32 s3, s22, {4*int(ch)}\ns_lshl_b32 s42, s3, 19\ns_lshl_b32 s43, s3, 7\nbuffer_load_dword v29, v44, s[8:11], s42 offen\nbuffer_load_dword v29, v44, s[8:11], s42 offen offset:128\nbuffer_load_dword v29, v45, s[4:7], s43 offen"); n += 3
            elif ch in "of":
                A("s_add_u32 s3, s21, s34\ns_lshl_b32 s3, s3, 16\ns_and_b32 s45, s45, 0xffff\nv_lshlrev_b32 v47, 7, v0")
                if ch == "o":
                    for g in range(4): A("buffer_load_dword v29, v47, s[44:47], s3 offen\ns_add_u32 s3, s3, 8192")
                else: A("v_and_b32 v47, 0x380, v47\ns_add_u32 s3, s3, 57344\nbuffer_load_dword v29, v47, s[44:47], s3 offen")
                n += 4 if ch == "o" else 1
            elif ch in "kv": touch("s[12:15]" if ch == "k" else "s[48:51]"); n += 4
            else:
                A(f"s_add_u32 s3, s22, {4*(ch == 'b')}\ns_xor_b32 s3, s3, s20\ns_lshl_b32 s42, s3, 18\ns_add_u32 s43, s42, {1<<17}")
                for so in ("s42", "s43"): A(f"buffer_load_dword v29, v46, s[52:55], {so} offen\nbuffer_load_dword v29, v46, s[52:55], {so} offen offset:128")
                n += 4
        A(f"s_add_u32 s3, s29, 4\nv_mov_b32 v35, s3\ns_waitcnt vmcnt({n})\ns_branch L_nw\nL_t{k}:")
    A("L_np:\ns_add_u32 s100, s100, 1")
    for it, (g0, n) in enumerate((sum(map(int, str(fs)[:k])), int(str(fs)[k])) for k in range(len(str(fs)))):
        A(f"s_cmp_lg_u32 s100, {it+1}\ns_cbranch_scc1 L_ns{it}")
        fills(g0, n)
        A(f"s_add_u32 s3, s29, 4\nv_mov_b32 v35, s3\ns_waitcnt vmcnt({4*n})\ns_branch L_nw\nL_ns{it}:")
    A("L_ns:")
    post(f"L_nw:\ns_cmp_eq_u32 s29, {cu-3}\ns_cbranch_scc1 L_fchk\nL_fret:")
    A("s_cmp_lt_i32 s29, 13\ns_cbranch_scc1 L_l1")
    stamp()
    A("L_l2:")
    pre()
    A("s_sub_u32 s3, s29, 13\ns_lshl_b32 s3, s3, 2\ns_lshr_b32 s42, s101, s3\ns_and_b32 s42, s42, 7\ns_xor_b32 s42, s42, s20\ns_lshl_b32 s42, s42, 18")
    issue("s[52:55]", 20, "s42", [1 << 15], ntw, 0, n=8, tok=tok2)
    if iu:
        A(f"s_cmp_lg_u32 s29, {iu-3}\ns_cbranch_scc1 L_n2")
        fills(8, 6)
        A(f"s_add_u32 s3, s29, 4\nv_mov_b32 v35, s3\ns_waitcnt vmcnt(24)\ns_branch L_w2\nL_n2:\ns_cmp_lg_u32 s29, {c2-3}\ns_cbranch_scc1 L_n3\ns_load_dwordx8 s[80:87], s[38:39], s21 glc\nL_n3:")
        post(f"s_cmp_eq_u32 s29, {c2-3}\ns_cbranch_scc1 L_fchk2\nL_w2:")
        A(f"s_cmp_lg_u32 s29, {iu+1}\ns_cbranch_scc1 L_n4\ns_add_u32 s3, s21, s34\nv_mov_b32 v36, s3\ns_getreg_b32 s3, hwreg(HW_REG_XCC_ID, 0, 4)\ns_or_b32 s3, s3, 48\nv_mov_b32 v37, s3\ns_mov_b64 exec, 1\ns_waitcnt vmcnt(0)\nglobal_store_byte v36, v37, s[38:39] sc1\ns_mov_b64 exec, -1\nL_n4:")
    else: post()
    A("s_cmp_lt_i32 s29, 21\ns_cbranch_scc1 L_l2")
    if wb: A(f"s_lshr_b32 s3, s2, 3\ns_lshl_b32 s3, s3, 2\ns_add_u32 s3, s3, s22\ns_cmp_lg_u32 s3, {wb-1}\ns_cbranch_scc1 L_lend\nbuffer_wbl2 sc1\ns_waitcnt vmcnt(0)")
    A("L_lend:")
    stamp()
    if stamps: A("s_and_b32 s45, s45, 0xffff")
    stamp_store(1)
    if tl: A(f"s_lshl_b32 s3, s2, 2\ns_add_u32 s3, s3, s22\ns_lshl_b32 s3, s3, 8\ns_add_u32 s3, s3, {STAMP + (1<<20)}\nv_lshlrev_b32 v1, 2, v0\nbuffer_store_dword v34, v1, s[44:47], s3 offen\ns_waitcnt vmcnt(0)")
    role[0] = 0
    A("s_endpgm")
    if iu: A("L_fchk2:\ns_mov_b32 s59, 0x20202020\ns_branch L_fc")
    A("L_fchk:\ns_mov_b32 s59, 0x10101010\nL_fc:\ns_mov_b32 s33, 0x40000\ns_waitcnt lgkmcnt(0)")
    A("s_and_b64 s[42:43], s[80:81], s[82:83]\ns_and_b64 s[42:43], s[42:43], s[84:85]\ns_and_b64 s[42:43], s[42:43], s[86:87]\ns_and_b32 s42, s42, s43\ns_and_b32 s42, s42, s59\ns_cmp_lg_u32 s42, s59\ns_cbranch_scc1 L_fp\nL_fok:")
    if iu: A("s_bitcmp1_b32 s59, 5\ns_cbranch_scc1 L_w2")
    late = ("L_fp:\nv_and_b32 v38, 7, v0\nv_lshl_add_u32 v38, v38, 2, s21\nL_fp1:\nglobal_load_dword v39, v38, s[38:39] sc1\ns_waitcnt vmcnt(0)\n"
                 + "".join(f"v_readlane_b32 s{80+i}, v39, {i}\n" for i in range(8))
                 + "v_and_b32 v39, s59, v39\nv_cmp_ne_u32 vcc, s59, v39\ns_cbranch_vccz L_fok\ns_sub_u32 s33, s33, 1\ns_cbranch_scc1 L_fok\ns_sleep 8\ns_branch L_fp1")
    for k in range(1, 4): A(f"s_cmp_eq_u32 s18, {k}\ns_cselect_b64 s[80:81], s[{80+2*k}:{81+2*k}], s[80:81]")
    A(f"s_getreg_b32 s42, hwreg(HW_REG_XCC_ID, 0, 4)\ns_or_b32 s42, s42, {16+32*fx}\ns_mul_i32 s42, s42, 0x01010101\ns_mov_b32 s43, s42\ns_and_b32 s80, s80, 0xdfdfdfdf\ns_and_b32 s81, s81, 0xdfdfdfdf\ns_cmp_eq_u64 s[42:43], s[80:81]")
    A("s_cselect_b32 s42, 1, 0\nv_mov_b32 v38, 32\nv_mov_b32 v39, s42\nds_write_b32 v38, v39\ns_branch L_fret\n" + late)
    nst[0] = 0
    A("L_compute:")
    if prc: A(f"s_setprio {prc}")
    A("s_lshl_b32 s3, s16, 8\ns_add_u32 s3, s3, 256\nv_add_u32 v16, s3, v13\nds_write_b32 v16, v12")
    ACC, OUT, HELD, WF, XF, PF = 64, 128, 192, 16, 48, 56
    A("v_lshrrev_b32 v10, 5, v0\nv_bfe_u32 v11, v0, 2, 2\nv_bfe_u32 v12, v0, 4, 1\nv_and_b32 v13, 1, v0\nv_bfe_u32 v14, v0, 1, 1")
    A("v_lshl_add_u32 v15, v10, 3, v11\nv_lshlrev_b32 v15, 8, v15\nv_lshl_add_u32 v15, v11, 6, v15\nv_lshl_add_u32 v15, v12, 5, v15\nv_lshl_add_u32 v15, v13, 4, v15\nv_lshl_add_u32 v2, v14, 3, v15")
    A(f"v_add_u32 v2, {RB}, v2")
    for b in range(1, 4): A(f"v_xor_b32 v{2+b}, {b*64}, v2")
    A("v_and_b32 v11, 31, v0\nv_bfe_u32 v12, v0, 1, 3\nv_xor_b32 v12, v12, v10\nv_lshlrev_b32 v12, 4, v12\nv_lshl_add_u32 v12, v11, 7, v12")
    A(f"s_lshl_b32 s3, s16, 12\ns_add_u32 s3, s3, {16384+RB}\nv_add_u32 v6, s3, v12")
    for s in range(1, 4): A(f"v_xor_b32 v{6+s}, {s*32}, v6")
    A("v_lshlrev_b32 v1, 4, v0")
    for r in range(64): A(f"v_mov_b32 v{ACC+r}, 0")
    A("s_lshl_b32 s23, s19, 2\ns_add_u32 s23, s23, s16")
    A("s_waitcnt lgkmcnt(0)\ns_barrier")
    A("s_lshl_b32 s25, s18, 3\ns_add_u32 s25, s25, s21\ns_lshl_b32 s24, s25, 16\ns_lshl_b32 s3, s16, 13\ns_add_u32 s24, s24, s3\ns_add_u32 s25, s25, s20")
    A("s_lshl_b32 s34, s20, 16\ns_add_u32 s34, s34, s24")
    A("v_mov_b32 v13, v16\nv_mov_b32 v12, 0\nv_mov_b32 v11, 0")
    A("s_and_b32 s45, s45, 0xffff")
    A("s_mov_b32 s12, s36\ns_and_b32 s13, s37, 0xffff\ns_mov_b32 s14, 0x200000\ns_mov_b32 s15, 0x20000")
    A("s_mov_b32 s26, 0")
    def rd_w(s, b, buf):
        A(f"ds_read_b64_tr_b16 v[{WF+16*buf+4*b}:{WF+16*buf+4*b+1}], v{2+b} offset:{s*4096}")
        A(f"ds_read_b64_tr_b16 v[{WF+16*buf+4*b+2}:{WF+16*buf+4*b+3}], v{2+b} offset:{s*4096+1024}")
    def rd_x(s, buf): A(f"ds_read_b128 v[{XF+4*buf}:{XF+4*buf+3}], v{6+s}")
    def mf(ph, b, buf, first):
        w = f"v[{WF+16*buf+4*b}:{WF+16*buf+4*b+3}]"; x = f"v[{XF+4*buf}:{XF+4*buf+3}]"; a = f"v[{ACC+16*b}:{ACC+16*b+15}]"
        c = "0" if first else a
        if hack16:
            for h in range(2):
                r0 = ACC+16*b+8*buf+4*h
                xx = f"v[{XF+4*(buf^h)}:{XF+4*(buf^h)+3}]"
                A(f"v_mfma_f32_16x16x32_bf16 v[{r0}:{r0+3}], {w}, {xx}, v[{r0}:{r0+3}]")
            return
        A(f"v_mfma_f32_32x32x16_bf16 {a}, {w}, {x}, {c}" if ph == 1 else f"v_mfma_f32_32x32x16_bf16 {a}, {x}, {w}, {c}")
    retry = []
    nw = [0]
    def adv(): A(f"s_add_u32 s26, s26, 1\ns_cmp_eq_u32 s26, {S}\ns_cselect_b32 s26, 0, s26\ns_cselect_b32 s27, {-(S-1)*32768 & 0xffffffff}, s28\nv_add_u32 v12, 1, v12\nv_lshlrev_b32 v11, 2, s26")
    def sig(): A("ds_write_b32 v13, v12\nds_read_b32 v10, v11")
    def rdy():
        n = nw[0]; nw[0] += 1
        A(f"L_rc{n}:\ns_waitcnt lgkmcnt(0)\nv_cmp_le_u32 vcc, v10, v12\ns_cbranch_vccnz L_rw{n}\nL_rx{n}:")
        retry.append(f"L_rw{n}:\ns_sub_u32 s92, s92, 1\ns_cmp_lt_i32 s92, 0\ns_cbranch_scc1 L_rx{n}\n{'' if slc < 0 else 's_sleep %d' % slc}\nds_read_b32 v10, v11\ns_branch L_rc{n}")
    def tile(ph, first=False, extra=None, tail=None):
        extra = extra or {}
        for s in range(3):
            buf = s & 1
            for b in range(4):
                A(f"s_waitcnt lgkmcnt({6 if b == 0 else 7})")
                mf(ph, b, buf, first and s == 0)
                if b == 0: rd_x(s+1, buf ^ 1)
                rd_w(s+1, b, buf ^ 1)
                if (s, b) in extra: A(extra[(s, b)])
                if s == 2 and b == 0: adv()
        if tail == "last":
            for b in range(4): A(f"s_waitcnt lgkmcnt({6-2*b})"); mf(ph, b, 1, False)
            return
        sig()
        A("s_waitcnt lgkmcnt(8)"); mf(ph, 0, 1, False)
        for r in range(2, 6): A(f"v_add_u32 v{r}, s27, v{r}")
        A("s_waitcnt lgkmcnt(6)"); mf(ph, 1, 1, False)
        for r in range(6, 10): A(f"v_add_u32 v{r}, s27, v{r}")
        if tail == "k":
            for b in (2, 3): A(f"s_waitcnt lgkmcnt({8-2*b})"); mf(ph, b, 1, False)
            return
        rdy()
        rd_x(0, 0); rd_w(0, 0, 0)
        mf(ph, 2, 1, False)
        rd_w(0, 1, 0); rd_w(0, 2, 0)
        mf(ph, 3, 1, False)
        rd_w(0, 3, 0)
    A("s_mov_b32 s28, 32768")
    KF, SA, VF = 128, 160, 224
    A(f"s_lshl_b32 s3, s16, 12\ns_add_u32 s3, s3, {STG-RB}\nv_lshrrev_b32 v15, 5, v0\nv_lshlrev_b32 v15, 10, v15\nv_sub_u32 v15, s3, v15\nv_mov_b32 v10, 0")
    for k in range(4): A(f"v_add_u32 v{PF+k}, {STG-RB-16384}, v{6+k}\nv_add_u32 v{PF+4+k}, v{2+k}, v15")
    A(f"s_add_u32 s35, s19, s20\ns_add_u32 s35, s35, {po-D+4}\ns_and_b32 s35, s35, 3\ns_mov_b32 s31, 0")
    def piece(n, ks):
        r = f"L_pc{n}:\ns_waitcnt lgkmcnt(4)\ns_add_u32 s31, s31, 1\n"
        for k in ks:
            if k < 3: r += f"s_cmp_lg_u32 s31, {k+1}\ns_cbranch_scc1 L_pc{n}{k}\n"
            if k < 2: r += "".join(f"ds_read_b128 v[{KF+16*k+4*s}:{KF+16*k+4*s+3}], v{PF+s}\n" for s in range(4))
            else: r += "".join(f"ds_read_b64_tr_b16 v[{VF+8*b+4*(k-2)+2*h}:{VF+8*b+4*(k-2)+2*h+1}], v{PF+4+b} offset:{h*2048}\n" for b in range(4) for h in range(2))
            r += f"s_branch L_pr{n}\nL_pc{n}{k}:\n" if k < 3 else f"s_branch L_pr{n}"
        retry.append(r)
        return {(0, 1): f"s_cmp_eq_u32 s26, s35\ns_cbranch_scc1 L_pc{n}\nL_pr{n}:"}
    stamp()
    rdy()
    stamp()
    rd_x(0, 0)
    for b in range(4): rd_w(0, b, 0)
    if split:
        A(f"s_mov_b32 s29, {split}\nL_p0:")
        tile(1)
        A("s_sub_u32 s29, s29, 1\ns_cmp_lg_u32 s29, 0\ns_cbranch_scc1 L_p0")
        stamp()
    A(f"s_mov_b32 s29, {15-split}\nL_p1:")
    tile(1, extra=piece("a", range(4)))
    A("s_sub_u32 s29, s29, 1\ns_cmp_lg_u32 s29, 0\ns_cbranch_scc1 L_p1")
    tile(1, tail="k", extra={**piece("b", [3]), (0, 2): "v_mov_b32 v15, 32\nds_read_b32 v15, v15"})
    stamp()
    OB = [128, 160, 192, 224]
    for i in range(16): A(f"v_cvt_pk_bf16_f32 v{HELD+i}, v{ACC+2*i}, v{ACC+2*i+1}")
    for ks in range(8):
        A(f"v_mfma_f32_32x32x16_bf16 v[{SA}:{SA+15}], v[{KF+4*ks}:{KF+4*ks+3}], v[{HELD+4*ks}:{HELD+4*ks+3}], " + ("0" if ks == 0 else f"v[{SA}:{SA+15}]"))
        if ks < 4:
            for i in range(16+4*ks, 20+4*ks): A(f"v_cvt_pk_bf16_f32 v{HELD+i}, v{ACC+2*i}, v{ACC+2*i+1}")
    import struct
    c = struct.unpack("<I", struct.pack("<f", math.log2(math.e) / math.sqrt(128.0)))[0]
    A(f"s_mov_b32 s30, {c:#x}\ns_add_u32 s3, s34, 4096\nv_readfirstlane_b32 s4, v15\ns_nop 7\ns_cmp_eq_u32 s4, 1")
    A(f"v_max3_f32 v14, v{SA}, v{SA+1}, v{SA+2}")
    for r in range(3, 15, 2): A(f"v_max3_f32 v14, v14, v{SA+r}, v{SA+r+1}")
    A(f"v_max_f32 v14, v14, v{SA+15}\nv_mov_b32 v15, v14\ns_nop 1\nv_permlane32_swap_b32 v14, v15\ns_nop 1\nv_max_f32 v14, v14, v15\nv_mul_f32 v14, s30, v14")
    for r in range(16): A(f"v_fma_f32 v{SA+r}, v{SA+r}, s30, -v14")
    for r in range(16): A(f"v_exp_f32 v{SA+r}, v{SA+r}")
    A(f"s_nop 0\nv_add_f32 v14, v{SA}, v{SA+1}\nv_add_f32 v15, v{SA+2}, v{SA+3}")
    for r in range(4, 16, 2): A(f"v_add_f32 v14, v14, v{SA+r}\nv_add_f32 v15, v15, v{SA+r+1}")
    A("v_add_f32 v14, v14, v15\nv_mov_b32 v15, v14\ns_nop 1\nv_permlane32_swap_b32 v14, v15\ns_nop 1\nv_add_f32 v14, v14, v15\nv_rcp_f32 v14, v14\ns_nop 0")
    for r in range(16): A(f"v_mul_f32 v{SA+r}, v{SA+r}, v14")
    for i in range(8): A(f"v_cvt_pk_bf16_f32 v{PF+i}, v{SA+2*i}, v{SA+2*i+1}")
    A("s_nop 1")
    def ocv(b):
        for i in range(8): A(f"v_cvt_pk_bf16_f32 v{OB[0]+8*b+i}, v{ACC+16*b+2*i}, v{ACC+16*b+2*i+1}")
        st = lambda fl: "".join(f"buffer_store_dwordx4 v[{OB[0]+8*b+4*s}:{OB[0]+8*b+4*s+3}], v1, s[44:47], {'s3' if b > 1 else 's34'} offen offset:{(2*b+s)%4*1024} {fl}\n" for s in range(2))
        A(f"s_cbranch_scc0 L_os{b}\n" + st(o2) + f"L_or{b}:")
        retry.append(f"L_os{b}:\n" + st("sc1") + f"s_branch L_or{b}")
    for b in range(4):
        for s in range(2): A(f"v_mfma_f32_32x32x16_bf16 v[{ACC+16*b}:{ACC+16*b+15}], v[{VF+8*b+4*s}:{VF+8*b+4*s+3}], v[{PF+4*s}:{PF+4*s+3}], " + (f"v[{ACC+16*b}:{ACC+16*b+15}]" if s else "0"))
        if b >= 2: ocv(b - 2)
    ocv(2); ocv(3)
    rdy()
    for b in range(4): rd_w(0, b, 0)
    stamp()
    def ldn(p, so, fl, n, off=0): return "\n".join(f"buffer_load_dwordx4 v[{p+4*i}:{p+4*i+3}], v1, s[44:47], {so} offen offset:{off+1024*i} {fl}" for i in range(n))
    def olst(i): return [(OB[i % 4], f"s{4+2*(i%4)}", 4), (OB[i % 4] + 16, f"s{5+2*(i%4)}", 4)]
    def oload(i):
        so = 4 + 2*(i % 4)
        return f"s_lshr_b32 s101, s101, 4\ns_and_b32 s{so}, s101, 7\ns_xor_b32 s{so}, s{so}, s20\ns_lshl_b32 s{so}, s{so}, 16\ns_add_u32 s{so}, s{so}, s24\ns_add_u32 s{so+1}, s{so}, 4096\n" + "\n".join(ldn(p, s, psc, n) for p, s, n in olst(i))
    def mx(regs):
        r = [f"v_max3_u32 v14, v{regs[0]}, v{regs[1]}, v{regs[2]}"]
        for i in range(3, len(regs) - 1, 2): r.append(f"v_max3_u32 v14, v14, v{regs[i]}, v{regs[i+1]}")
        r.append(f"v_max_u32 v14, v14, v{regs[-1]}\nv_cmp_eq_u32 vcc, -1, v14")
        return r
    def chk(name, lst, cnt=0):
        m = mx([p+i for p, _, n in lst for i in range(4*n)])
        retry.append(f"L_rt{name}:\ns_sub_u32 s33, s33, 1\ns_cmp_lt_i32 s33, 0\ns_cbranch_scc1 L_ok{name}\n" + "\n".join(ldn(p, so, "sc1", n) for p, so, n in lst)
                     + "\ns_waitcnt vmcnt(0)\n" + "\n".join(m) + f"\ns_cbranch_vccnz L_rt{name}\ns_branch L_ok{name}")
        return [f"s_waitcnt vmcnt({cnt})"] + m + [f"s_cbranch_vccnz L_rt{name}\nL_ok{name}:"]
    def mf2(i, s, b):
        a = f"v[{ACC+16*b}:{ACC+16*b+15}]"; x = OB[i % 4] + 4*s; w = WF + 16*(s & 1) + 4*b
        A(f"v_mfma_f32_32x32x16_bf16 {a}, v[{w}:{w+3}], v[{x}:{x+3}], " + ("0" if i == 0 and s == 0 else a))
    A("s_mov_b32 s33, 0x40000")
    for i in range(8):
        ex = {}
        if i == 0:
            for k in range(1, PD + 1): ex[(p1, k)] = oload(k)
        elif i + PD < 8: ex[(0, 1)] = oload(i + PD)
        if i < 7:
            ck = chk(f"o{i}", olst(i + 1), 8*(min(i + PD, 7) - i - 1))
            q = 6 if i == 0 else pc
            for k in range(4): ex[(q, k)] = "\n".join(ck[[0, 5, 9, 13][k]:[5, 9, 13, 99][k]])
        for s in range(7):
            for b in range(4):
                A("s_waitcnt lgkmcnt(6)"); mf2(i, s, b); rd_w(s+1, b, (s & 1) ^ 1)
                if (s, b) in ex: A(ex[(s, b)])
                if s == 6 and b == 0 and i < 7: adv()
        if i == 7:
            for b in range(4): A(f"s_waitcnt lgkmcnt({6-2*b})"); mf2(i, 7, b)
            break
        sig()
        A("s_waitcnt lgkmcnt(8)"); mf2(i, 7, 0)
        for r in range(2, 6): A(f"v_add_u32 v{r}, s27, v{r}")
        A("s_waitcnt lgkmcnt(6)"); mf2(i, 7, 1)
        rdy()
        rd_w(0, 0, 0); mf2(i, 7, 2); rd_w(0, 1, 0); rd_w(0, 2, 0); mf2(i, 7, 3); rd_w(0, 3, 0)
        if i in (1, 2): stamp()
    stamp()
    OUT, SUM, IN, TMP = ACC, 128, 144, 168
    A("s_lshl_b32 s3, s16, 11\ns_sub_u32 s6, s34, s3\ns_add_u32 s6, s6, 32768\ns_add_u32 s7, s6, 4096\ns_lshl_b32 s4, s18, 19\ns_sub_u32 s5, s6, s4\ns_sub_u32 s5, s5, 2048")
    for b in range(4):
        A(f"s_cmp_eq_u32 s18, {b}\ns_cbranch_scc1 L_own{b}")
        A(f"s_sub_u32 s3, s18, {b}\ns_and_b32 s3, s3, 3\ns_lshl_b32 s3, s3, 11\ns_add_u32 s3, s3, s5")
        for i in range(8): A(f"v_cvt_pk_bf16_f32 v{HELD+8*b+i}, v{OUT+16*b+2*i}, v{OUT+16*b+2*i+1}")
        for i in range(2): A(f"buffer_store_dwordx4 v[{HELD+8*b+4*i}:{HELD+8*b+4*i+3}], v1, s[44:47], s3 offen offset:{1024*i} sc1")
        A(f"s_branch L_nxt{b}\nL_own{b}:")
        for r in range(16): A(f"v_mov_b32 v{SUM+r}, v{OUT+16*b+r}")
        A(f"L_nxt{b}:\ns_add_u32 s5, s5, {1<<19}")
    lst = [(IN, "s6", 4), (IN+16, "s7", 2)]
    for p, so, n in lst: A(ldn(p, so, "sc1", n))
    A("v_and_b32 v11, 31, v0\nv_lshrrev_b32 v12, 5, v0\nv_lshlrev_b32 v12, 4, v12\nv_lshl_add_u32 v12, v11, 12, v12\ns_mov_b32 s30, 0xffff0000")
    A("s_lshl_b32 s3, s23, 17\ns_lshl_b32 s4, s17, 11\ns_add_u32 s3, s3, s4\ns_lshl_b32 s4, s20, 8\ns_add_u32 s3, s3, s4\ns_lshl_b32 s4, s18, 6\ns_add_u32 s3, s3, s4")
    stamp()
    A("\n".join(chk("c", lst)))
    stamp()
    for i in range(24): A(f"v_lshlrev_b32 v{TMP+i}, 16, v{IN+i}\nv_and_b32 v{IN+i}, s30, v{IN+i}")
    for k in range(3):
        for i in range(8): A(f"v_add_f32 v{SUM+2*i}, v{SUM+2*i}, v{TMP+8*k+i}\nv_add_f32 v{SUM+2*i+1}, v{SUM+2*i+1}, v{IN+8*k+i}")
    for i in range(8): A(f"v_cvt_pk_bf16_f32 v{WF+i}, v{SUM+2*i}, v{SUM+2*i+1}")
    A(f"buffer_store_dwordx4 v[{WF}:{WF+3}], v12, s[12:15], s3 offen {osc}\nbuffer_store_dwordx4 v[{WF+4}:{WF+7}], v12, s[12:15], s3 offen offset:32 {osc}")
    if stamps or probe is not None: A("s_waitcnt vmcnt(0)")
    stamp()
    stamp_store(0)
    if probe is not None:
        if pwg >= 0: A(f"s_cmp_lg_u32 s2, {pwg}\ns_cbranch_scc1 L_end")
        if probe == -1: A("s_mov_b32 s62, s90")
        A("s_add_u32 s62, s62, 5000\nL_spin:\ns_sleep 4\ns_memrealtime s[64:65]\ns_waitcnt lgkmcnt(0)\ns_sub_u32 s64, s64, s62\ns_cmp_lt_i32 s64, 0\ns_cbranch_scc1 L_spin")
    A("L_end:\ns_endpgm")
    for r in retry: A(r)
    o.append(f'''.section .rodata,"a"
.p2align 6
.amdhsa_kernel {NAME}_kernel
  .amdhsa_next_free_vgpr 256
  .amdhsa_next_free_sgpr 102
  .amdhsa_accum_offset 256
  .amdhsa_group_segment_fixed_size 0
  .amdhsa_kernarg_size 104
  .amdhsa_user_sgpr_count 2
  .amdhsa_user_sgpr_kernarg_segment_ptr 1
  .amdhsa_system_sgpr_workgroup_id_x 1
.end_amdhsa_kernel''')
    return "\n".join(o) + "\n"

if __name__ == "__main__":
    kw = {}
    out = sys.argv[1]
    for a in sys.argv[2:]:
        k, v = a.split("=")
        kw[k] = int(v) if v.lstrip("-").isdigit() else v.replace('+', ' ')
    open(out, "w").write(gen(**kw))
```

```python
import sys, math
NAME = "concat_heads__gqa_block_cached__mha_block_cached__near_ridge"
HDR = open("cdna_kernels/%s.s.ref" % NAME).read().split("; @launch")[0]

def gen(D=1, tok=3, split=0, allhit=0, hk=0, D2=1, swp=0, PD=2, p1=3, pc=5, fo=1, po=0, o2='', wb=0, fx=0, nat=0, tw='', xs=0, xr=0, iu=0, c2=23, fl=1, fs='6', p0=1, pf=1, fso='sc1', cu=14, gl='glc', tok2=3, slc=-1, sl=1, prl=0, prc=0, ntw="", ntx="", ntk="", ntv="", stamps=False, g1=4, g2=1, fi=0, ki=-1, vi=-1, fsc="sc1", psc="", noload=0, nocomp=0, tl=0, hack16=0, osc="", probe=None, pwg=-1):
    o = []
    role = [0]
    def A(s):
        for l in s.split("\n"):
            if noload and "offen" in l and l.strip().endswith("lds"): continue
            if nocomp & 1 and l.strip().startswith("v_mfma"): continue
            if nocomp & 2 and l.strip().startswith("ds_read") and "ds_read_b32" not in l: continue
            o.append("    " + l.strip() if not l.strip().endswith(":") else l.strip())
    S = 4; RB = 2048
    STG = RB + S * 32768; LDS = STG + 16384
    STAMP = 1 << 26
    nst = [0]
    def stamp():
        if probe is not None and role[0] == 0:
            if nst[0] == 0: A("s_memrealtime s[60:61]\ns_waitcnt lgkmcnt(0)\ns_mov_b32 s62, s60")
            elif nst[0] == probe: A("s_memrealtime s[62:63]\ns_waitcnt lgkmcnt(0)")
            nst[0] += 1
        if stamps:
            if nst[0] == 0: A("s_memtime s[96:97]")
            A(f"s_memrealtime s[{60+2*nst[0]}:{61+2*nst[0]}]\ns_memtime s[98:99]\ns_waitcnt lgkmcnt(0)")
            nst[0] += 1
    def stamp_store(role):
        if stamps:
            A(f"s_lshl_b32 s3, s2, 10\ns_lshl_b32 s4, s16, 7\ns_add_u32 s3, s3, s4\ns_add_u32 s3, s3, {STAMP}\nv_mov_b32 v1, 0")
            for i in range(nst[0]):
                A(f"v_mov_b32 v2, s{60+2*i}\nbuffer_store_dword v2, v1, s[44:47], s3 offen offset:{4*i}")
            A(f"s_sub_u32 s98, s98, s96\nv_mov_b32 v2, s98\nbuffer_store_dword v2, v1, s[44:47], s3 offen offset:120\nv_mov_b32 v2, {nst[0]}\nbuffer_store_dword v2, v1, s[44:47], s3 offen offset:124")
            A("v_mov_b32 v2, s90\nbuffer_store_dword v2, v1, s[44:47], s3 offen offset:116\ns_waitcnt vmcnt(0)")
    o.append(HDR + f"; @launch grid=(256,1,1) block=(512,1,1) lds={LDS}")
    o.append(f'.amdgcn_target "amdgcn-amd-amdhsa--gfx950"\n.text\n.globl {NAME}_kernel\n.p2align 8\n.type {NAME}_kernel,@function\n{NAME}_kernel:')
    if stamps or probe == -1: A("s_memrealtime s[90:91]")
    A("s_cmp_ge_u32 s2, 256\ns_cbranch_scc1 L_end")
    A("s_bfe_u32 s17, s2, 0x10002\ns_and_b32 s18, s2, 3\ns_lshr_b32 s19, s2, 6\ns_bfe_u32 s20, s2, 0x30003")
    A("s_mul_i32 s3, s17, 40\ns_add_u32 s4, s0, s3\ns_addc_u32 s5, s1, 0")
    A("s_load_dwordx8 s[24:31], s[4:5], 0\ns_load_dwordx2 s[32:33], s[4:5], 32\ns_load_dwordx4 s[36:39], s[0:1], 80\ns_load_dwordx2 s[44:45], s[0:1], 96")
    A("v_lshrrev_b32 v1, 6, v0\nv_and_b32 v0, 63, v0\nv_readfirstlane_b32 s16, v1")
    A("s_lshl_b32 s21, s17, 2\ns_add_u32 s21, s21, s19\ns_lshl_b32 s21, s21, 5")
    A("s_mov_b32 s92, 0x1000000\ns_mov_b32 s46, 0x10000000\ns_mov_b32 s47, 0x20000")
    def order2(r):
        seq = [0]
        for p in range(1, 8):
            seq.append(p + D2 if D2 and (p + D2) % 4 == r and p + D2 < 8 and p + D2 not in seq else min(x for x in range(8) if x not in seq))
        return seq
    for r in range(4):
        v = sum(t << (4*p) for p, t in enumerate(order2(r)))
        A(f"s_mov_b32 s101, {v:#x}" if r == 0 else f"s_cmp_eq_u32 s19, {r}\ns_cselect_b32 s101, {v:#x}, s101")
    A("v_lshlrev_b32 v13, 2, v0\nv_mov_b32 v12, 0\ns_cmp_ge_u32 s16, 4\ns_cbranch_scc0 L_compute")
    role[0] = 1
    if prl: A(f"s_setprio {prl}")
    A("s_and_b32 s22, s16, 3")
    A("v_cmp_eq_u32 vcc, 4, v0\nv_cndmask_b32 v12, v12, -3, vcc\nds_write_b32 v13, v12")
    A("s_lshl_b32 s23, s19, 2")
    A("s_lshl_b32 s34, s18, 3\ns_add_u32 s34, s34, s20")
    A("v_lshrrev_b32 v1, 3, v0\nv_lshrrev_b32 v2, 4, v0\nv_and_b32 v3, 7, v0\nv_xor_b32 v3, v3, v2\nv_lshlrev_b32 v3, 4, v3")
    A("v_xor_b32 v4, 64, v3")
    A("v_and_b32 v5, 15, v0\nv_lshlrev_b32 v6, 2, v2\nv_xor_b32 v6, v5, v6\nv_lshlrev_b32 v6, 4, v6")
    A("s_lshl_b32 s3, s23, 16")
    A("v_lshl_add_u32 v7, v1, 11, s3")
    for jj in range(4): A(f"v_add_u32 v{8+jj}, {jj*(16384-1024)}, v7\nv_add_u32 v{8+jj}, v{8+jj}, v{3+(jj&1)}")
    A("s_lshl_b32 s3, s34, 8\nv_lshl_add_u32 v7, v2, 13, s3\nv_add_u32 v7, v7, v6")
    for jj in range(4): A(f"v_add_u32 v{12+jj}, {jj*(32768-1024)}, v7")
    A("s_cmp_eq_u32 s17, 0\ns_cselect_b32 s35, 0, 8192\ns_cselect_b32 s14, 19, 22\ns_cselect_b32 s58, 15, 18\ns_cselect_b32 s59, 13, 16")
    A("s_lshl_b32 s89, 1, s58\ns_lshl_b32 s58, s23, s58\ns_lshl_b32 s59, s18, s59\ns_add_u32 s58, s58, s59")
    A("s_lshl_b32 s3, s18, 21\ns_lshl_b32 s59, s20, 8\ns_add_u32 s3, s3, s59\nv_lshl_add_u32 v7, v2, 11, s3\nv_add_u32 v7, v7, v6")
    for jj in range(4): A(f"v_add_u32 v{20+jj}, {jj*(8192-1024)}, v7")
    A("s_mul_i32 s59, s20, s35\ns_add_u32 s58, s58, s59\nv_lshl_add_u32 v7, v2, 8, s58\nv_lshl_add_u32 v5, v1, 8, s58")
    for jj in range(4): A(f"v_add_u32 v{24+jj}, {jj*1024}, v5\nv_add_u32 v{24+jj}, v{24+jj}, v{3+(jj&1)}")
    A("v_add_u32 v16, v7, v6")
    A("v_lshl_add_u32 v28, v0, 7, s58")
    A("s_lshl_b32 s3, s34, 8\nv_lshl_add_u32 v44, v0, 13, s3\ns_lshl_b32 s3, s23, 16\ns_lshr_b32 s42, s20, 2\ns_lshl_b32 s42, s42, 17\ns_add_u32 s3, s3, s42\nv_lshl_add_u32 v45, v0, 11, s3")
    A("s_lshl_b32 s3, s18, 21\ns_lshl_b32 s42, s20, 8\ns_add_u32 s3, s3, s42\nv_lshl_add_u32 v46, v0, 11, s3")
    def order(r):
        if allhit: return [0]*16
        if nat: return list(range(16))
        if D < 0: return [p ^ (r & (g1-1)) for p in range(16)]
        seq = []
        for p in range(16):
            t = p + D if (p + D) % 4 == r and p + D < 16 and p + D not in seq else min(x for x in range(16) if x not in seq)
            seq.append(t)
        return seq
    A("s_add_u32 s3, s19, s20\ns_and_b32 s3, s3, 3")
    for r in range(4):
        v = sum(t << (4*p) for p, t in enumerate(order(r)))
        if r == 0: A(f"s_mov_b32 s40, {v & 0xffffffff:#x}\ns_mov_b32 s41, {v >> 32:#x}")
        else: A(f"s_cmp_eq_u32 s3, {r}\ns_cselect_b32 s40, {v & 0xffffffff:#x}, s40\ns_cselect_b32 s41, {v >> 32:#x}, s41")
    A(f"s_sub_u32 s3, s3, {max(D,0)}\ns_and_b32 s3, s3, {3 if D >= 0 else 0}\ns_add_u32 s100, s3, {fo}\ns_and_b32 s100, s100, 3\ns_cmp_eq_u32 s100, s22\ns_cselect_b32 s100, 0, 99\ns_add_u32 s56, s3, {po}\ns_and_b32 s56, s56, 3\ns_cmp_eq_u32 s56, s22\ns_cselect_b32 s56, 0, 99")
    A("s_lshl_b32 s3, s22, 2\ns_lshr_b64 s[40:41], s[40:41], s3")
    A(f"s_lshl_b32 s57, s22, 15\ns_add_u32 s57, s57, {RB}")
    A("v_and_b32 v30, 3, v0\nv_lshlrev_b32 v30, 8, v30\nv_add_u32 v30, 256, v30\nv_cmp_lt_u32 vcc, 3, v0\nv_cndmask_b32 v30, v30, 16, vcc\nv_mov_b32 v31, s3\nv_mov_b32 v33, 16")
    A("s_waitcnt lgkmcnt(0)\ns_barrier\ns_mov_b32 s88, s29\ns_sub_u32 s29, s22, 3")
    A("s_mov_b32 s4, s24\ns_and_b32 s5, s25, 0xffff\ns_mov_b32 s6, 0x100000\ns_mov_b32 s7, 0x20000")
    A("s_mov_b32 s8, s30\ns_and_b32 s9, s31, 0xffff\ns_mov_b32 s10, 0x800000\ns_mov_b32 s11, 0x20000")
    A("s_lshl_b32 s14, 1, s14\ns_mov_b32 s12, s26\ns_and_b32 s13, s27, 0xffff\ns_mov_b32 s15, 0x20000")
    A("s_mov_b32 s48, s28\ns_and_b32 s49, s88, 0xffff\ns_mov_b32 s50, s14\ns_mov_b32 s51, 0x20000")
    A("s_mov_b32 s52, s32\ns_and_b32 s53, s33, 0xffff\ns_mov_b32 s54, 0x800000\ns_mov_b32 s55, 0x20000")
    nl = [0]
    def tls(i):
        if tl: A(f"s_memrealtime s[94:95]\ns_add_u32 s93, s29, 3\ns_lshr_b32 s93, s93, 2\ns_lshl_b32 s93, s93, 1\ns_add_u32 m0, s93, {i}\ns_waitcnt lgkmcnt(0)\nv_writelane_b32 v34, s94, m0")
    def pre():
        n = nl[0]; nl[0] += 1
        A(f"s_branch L_pe{n}\nL_pw{n}:\ns_sub_u32 s92, s92, 1\ns_cmp_lt_i32 s92, 0\ns_cbranch_scc1 L_px{n}\ns_sleep {sl}\nL_pe{n}:\nds_read_b32 v32, v30\ns_waitcnt lgkmcnt(0)\nv_cmp_gt_i32 vcc, s29, v32\ns_cbranch_vccnz L_pw{n}\nL_px{n}:")
        tls(0)
    def issue(srd, vb, so, step, fl, g0, x=0, vs=1, n=4, tok=tok, mb=None):
        for g in range(g0, g0 + n):
            A(f"s_add_u32 m0, s57, {(g^x)*4096}" if mb is None else f"s_mov_b32 m0, {mb+g*4096}")
            if g > g0: A(f"s_add_u32 {so}, {so}, {step[(g-g0-1) % len(step)]}")
            else: A("s_nop 0")
            for jj in range(4): A(f"buffer_load_dwordx4 v{vb+jj*vs}, {srd}, {so} offen offset:{jj*1024} {fl} lds")
            if g + 1 == tok: A("s_add_u32 s3, s29, 1\nv_mov_b32 v32, s3\nds_write_b32 v33, v32")
    def post(mid=None):
        A("s_add_u32 s3, s29, 4\nv_mov_b32 v35, s3\ns_waitcnt vmcnt(0)")
        if mid: A(mid)
        A("ds_write_b32 v31, v35")
        tls(1)
        A("s_add_u32 s29, s29, 4")
    stamp()
    A("L_l1:")
    pre()
    def fills(g0, n):
        A(f"s_add_u32 s3, s21, s34\ns_lshl_b32 s3, s3, 16\ns_add_u32 s3, s3, {g0*4096}\nv_lshlrev_b32 v36, 4, v0\ns_and_b32 s45, s45, 0xffff")
        for r in range(4): A(f"v_mov_b32 v{40+r}, -1")
        for g in range(n):
            for jj in range(4): A(f"buffer_store_dwordx4 v[40:43], v36, s[44:47], s3 offen offset:{jj*1024} {fsc if g0+g >= 8 else fso}")
            if g < n - 1: A("s_add_u32 s3, s3, 4096")
            elif g0 + n == 14: A("s_add_u32 s3, s3, 4096\nbuffer_store_dwordx4 v[40:43], v36, s[44:47], s3 offen sc1")
    def touch(srd):
        A("s_mov_b32 s3, 0")
        for g in range(4): A(f"buffer_load_dword v29, v28, {srd}, s3 offen\ns_add_u32 s3, s3, s89")
    for it in range(1, 4):
        if it in (fl, ki, vi):
            A(f"s_cmp_lg_u32 s100, {it}\ns_cbranch_scc1 L_x{it}")
            if it == fl: A("s_add_u32 s3, s21, s34\nv_mov_b32 v36, s3\ns_getreg_b32 s3, hwreg(HW_REG_XCC_ID, 0, 4)\ns_or_b32 s3, s3, 16\nv_mov_b32 v37, s3\ns_mov_b64 exec, 1\ns_waitcnt vmcnt(0)\nglobal_store_byte v36, v37, s[38:39] sc1\ns_mov_b64 exec, -1")
            if it == ki: touch("s[12:15]")
            if it == vi: touch("s[48:51]")
            A(f"L_x{it}:")
    A(f"s_cmp_lg_u32 s29, {cu-3}\ns_cbranch_scc1 L_nfl\ns_load_dwordx8 s[80:87], s[38:39], s21 {gl}\nL_nfl:")
    A(f"s_mul_i32 s3, s20, {xs}\ns_mul_i32 s42, s19, {xr}\ns_add_u32 s3, s3, s42\ns_add_u32 s3, s3, s40\ns_and_b32 s3, s3, 15\ns_lshr_b64 s[40:41], s[40:41], 16\ns_lshl_b32 s42, s3, 19\ns_lshl_b32 s43, s3, 7")
    issue("s[8:11]", 12, "s42", [1 << 17], ntw, 0)
    issue("s[4:7]", 8, "s43", [1 << 16], ntx, 4)
    A("s_cmp_gt_u32 s56, 3\ns_cbranch_scc1 L_np\ns_and_b32 s3, s56, 1\ns_cmp_gt_u32 s56, 1\ns_cbranch_scc1 L_pv\ns_lshl_b32 s42, s3, 7")
    issue("s[12:15]", 24, "s42", ["s89"], ntk, 0, tok=-1, mb=STG)
    A("s_branch L_pd\nL_pv:\ns_lshl_b32 s42, s3, 12")
    issue("s[48:51]", 16, "s42", ["s89"], ntv, 0, vs=0, tok=-1, mb=STG)
    A("L_pd:\ns_add_u32 s56, s56, 1")
    for k, spec in enumerate(tw.split(".") if tw else []):
        if not spec: continue
        A(f"s_cmp_lg_u32 s56, {k+1}\ns_cbranch_scc1 L_t{k}")
        n = 0
        for ch in spec:
            if ch in "123":
                A(f"s_add_u32 s3, s22, {4*int(ch)}\ns_lshl_b32 s42, s3, 19\ns_lshl_b32 s43, s3, 7\nbuffer_load_dword v29, v44, s[8:11], s42 offen\nbuffer_load_dword v29, v44, s[8:11], s42 offen offset:128\nbuffer_load_dword v29, v45, s[4:7], s43 offen"); n += 3
            elif ch in "of":
                A("s_add_u32 s3, s21, s34\ns_lshl_b32 s3, s3, 16\ns_and_b32 s45, s45, 0xffff\nv_lshlrev_b32 v47, 7, v0")
                if ch == "o":
                    for g in range(4): A("buffer_load_dword v29, v47, s[44:47], s3 offen\ns_add_u32 s3, s3, 8192")
                else: A("v_and_b32 v47, 0x380, v47\ns_add_u32 s3, s3, 57344\nbuffer_load_dword v29, v47, s[44:47], s3 offen")
                n += 4 if ch == "o" else 1
            elif ch in "kv": touch("s[12:15]" if ch == "k" else "s[48:51]"); n += 4
            else:
                A(f"s_add_u32 s3, s22, {4*(ch == 'b')}\ns_xor_b32 s3, s3, s20\ns_lshl_b32 s42, s3, 18\ns_add_u32 s43, s42, {1<<17}")
                for so in ("s42", "s43"): A(f"buffer_load_dword v29, v46, s[52:55], {so} offen\nbuffer_load_dword v29, v46, s[52:55], {so} offen offset:128")
                n += 4
        A(f"s_add_u32 s3, s29, 4\nv_mov_b32 v35, s3\ns_waitcnt vmcnt({n})\ns_branch L_nw\nL_t{k}:")
    A("L_np:\ns_add_u32 s100, s100, 1")
    for it, (g0, n) in enumerate((8 + sum(map(int, str(fs)[:k])), int(str(fs)[k])) for k in range(len(str(fs)))):
        A(f"s_cmp_lg_u32 s100, {it+1}\ns_cbranch_scc1 L_ns{it}")
        fills(g0, n)
        A(f"s_add_u32 s3, s29, 4\nv_mov_b32 v35, s3\ns_waitcnt vmcnt({4*n+(g0+n == 14)})\ns_branch L_nw\nL_ns{it}:")
    A("L_ns:")
    post(f"L_nw:\ns_cmp_eq_u32 s29, {cu-3}\ns_cbranch_scc1 L_fchk\nL_fret:")
    A("s_cmp_lt_i32 s29, 13\ns_cbranch_scc1 L_l1")
    stamp()
    A("L_l2:")
    pre()
    A("s_sub_u32 s3, s29, 13\ns_lshl_b32 s3, s3, 2\ns_lshr_b32 s42, s101, s3\ns_and_b32 s42, s42, 7\ns_xor_b32 s42, s42, s20\ns_lshl_b32 s42, s42, 18")
    issue("s[52:55]", 20, "s42", [1 << 15], ntw, 0, n=8, tok=tok2)
    if iu:
        A(f"s_cmp_lg_u32 s29, {iu-3}\ns_cbranch_scc1 L_n2")
        fills(8, 6)
        A(f"s_add_u32 s3, s29, 4\nv_mov_b32 v35, s3\ns_waitcnt vmcnt(24)\ns_branch L_w2\nL_n2:\ns_cmp_lg_u32 s29, {c2-3}\ns_cbranch_scc1 L_n3\ns_load_dwordx8 s[80:87], s[38:39], s21 glc\nL_n3:")
        post(f"s_cmp_eq_u32 s29, {c2-3}\ns_cbranch_scc1 L_fchk2\nL_w2:")
        A(f"s_cmp_lg_u32 s29, {iu+1}\ns_cbranch_scc1 L_n4\ns_add_u32 s3, s21, s34\nv_mov_b32 v36, s3\ns_getreg_b32 s3, hwreg(HW_REG_XCC_ID, 0, 4)\ns_or_b32 s3, s3, 48\nv_mov_b32 v37, s3\ns_mov_b64 exec, 1\ns_waitcnt vmcnt(0)\nglobal_store_byte v36, v37, s[38:39] sc1\ns_mov_b64 exec, -1\nL_n4:")
    else: post()
    A("s_cmp_lt_i32 s29, 21\ns_cbranch_scc1 L_l2")
    if wb: A(f"s_lshr_b32 s3, s2, 3\ns_lshl_b32 s3, s3, 2\ns_add_u32 s3, s3, s22\ns_cmp_lg_u32 s3, {wb-1}\ns_cbranch_scc1 L_lend\nbuffer_wbl2 sc1\ns_waitcnt vmcnt(0)")
    A("L_lend:")
    stamp()
    if stamps: A("s_and_b32 s45, s45, 0xffff")
    stamp_store(1)
    if tl: A(f"s_lshl_b32 s3, s2, 2\ns_add_u32 s3, s3, s22\ns_lshl_b32 s3, s3, 8\ns_add_u32 s3, s3, {STAMP + (1<<20)}\nv_lshlrev_b32 v1, 2, v0\nbuffer_store_dword v34, v1, s[44:47], s3 offen\ns_waitcnt vmcnt(0)")
    role[0] = 0
    A("s_endpgm")
    if iu: A("L_fchk2:\ns_mov_b32 s59, 0x20202020\ns_branch L_fc")
    A("L_fchk:\ns_mov_b32 s59, 0x10101010\nL_fc:\ns_mov_b32 s33, 0x40000\ns_waitcnt lgkmcnt(0)")
    A("s_and_b64 s[42:43], s[80:81], s[82:83]\ns_and_b64 s[42:43], s[42:43], s[84:85]\ns_and_b64 s[42:43], s[42:43], s[86:87]\ns_and_b32 s42, s42, s43\ns_and_b32 s42, s42, s59\ns_cmp_lg_u32 s42, s59\ns_cbranch_scc1 L_fp\nL_fok:")
    if iu: A("s_bitcmp1_b32 s59, 5\ns_cbranch_scc1 L_w2")
    late = ("L_fp:\nv_and_b32 v38, 7, v0\nv_lshl_add_u32 v38, v38, 2, s21\nL_fp1:\nglobal_load_dword v39, v38, s[38:39] sc1\ns_waitcnt vmcnt(0)\n"
                 + "".join(f"v_readlane_b32 s{80+i}, v39, {i}\n" for i in range(8))
                 + "v_and_b32 v39, s59, v39\nv_cmp_ne_u32 vcc, s59, v39\ns_cbranch_vccz L_fok\ns_sub_u32 s33, s33, 1\ns_cbranch_scc1 L_fok\ns_sleep 8\ns_branch L_fp1")
    for k in range(1, 4): A(f"s_cmp_eq_u32 s18, {k}\ns_cselect_b64 s[80:81], s[{80+2*k}:{81+2*k}], s[80:81]")
    A(f"s_getreg_b32 s42, hwreg(HW_REG_XCC_ID, 0, 4)\ns_or_b32 s42, s42, {16+32*fx}\ns_mul_i32 s42, s42, 0x01010101\ns_mov_b32 s43, s42\ns_and_b32 s80, s80, 0xdfdfdfdf\ns_and_b32 s81, s81, 0xdfdfdfdf\ns_cmp_eq_u64 s[42:43], s[80:81]")
    A("s_cselect_b32 s42, 1, 0\nv_mov_b32 v38, 32\nv_mov_b32 v39, s42\nds_write_b32 v38, v39\ns_branch L_fret\n" + late)
    nst[0] = 0
    A("L_compute:")
    if prc: A(f"s_setprio {prc}")
    A("s_lshl_b32 s3, s16, 8\ns_add_u32 s3, s3, 256\nv_add_u32 v16, s3, v13\nds_write_b32 v16, v12")
    ACC, OUT, HELD, WF, XF, PF = 64, 128, 192, 16, 48, 56
    A("v_lshrrev_b32 v10, 5, v0\nv_bfe_u32 v11, v0, 2, 2\nv_bfe_u32 v12, v0, 4, 1\nv_and_b32 v13, 1, v0\nv_bfe_u32 v14, v0, 1, 1")
    A("v_lshl_add_u32 v15, v10, 3, v11\nv_lshlrev_b32 v15, 8, v15\nv_lshl_add_u32 v15, v11, 6, v15\nv_lshl_add_u32 v15, v12, 5, v15\nv_lshl_add_u32 v15, v13, 4, v15\nv_lshl_add_u32 v2, v14, 3, v15")
    A(f"v_add_u32 v2, {RB}, v2")
    for b in range(1, 4): A(f"v_xor_b32 v{2+b}, {b*64}, v2")
    A("v_and_b32 v11, 31, v0\nv_bfe_u32 v12, v0, 1, 3\nv_xor_b32 v12, v12, v10\nv_lshlrev_b32 v12, 4, v12\nv_lshl_add_u32 v12, v11, 7, v12")
    A(f"s_lshl_b32 s3, s16, 12\ns_add_u32 s3, s3, {16384+RB}\nv_add_u32 v6, s3, v12")
    for s in range(1, 4): A(f"v_xor_b32 v{6+s}, {s*32}, v6")
    A("v_lshlrev_b32 v1, 4, v0")
    for r in range(64): A(f"v_mov_b32 v{ACC+r}, 0")
    A("s_lshl_b32 s23, s19, 2\ns_add_u32 s23, s23, s16")
    A("s_waitcnt lgkmcnt(0)\ns_barrier")
    A("s_lshl_b32 s25, s18, 3\ns_add_u32 s25, s25, s21\ns_lshl_b32 s24, s25, 16\ns_lshl_b32 s3, s16, 13\ns_add_u32 s24, s24, s3\ns_add_u32 s25, s25, s20")
    A("s_lshl_b32 s34, s20, 16\ns_add_u32 s34, s34, s24")
    A("v_mov_b32 v13, v16\nv_mov_b32 v12, 0\nv_mov_b32 v11, 0")
    A("s_and_b32 s45, s45, 0xffff")
    A("s_mov_b32 s12, s36\ns_and_b32 s13, s37, 0xffff\ns_mov_b32 s14, 0x200000\ns_mov_b32 s15, 0x20000")
    A("s_mov_b32 s26, 0")
    def rd_w(s, b, buf):
        A(f"ds_read_b64_tr_b16 v[{WF+16*buf+4*b}:{WF+16*buf+4*b+1}], v{2+b} offset:{s*4096}")
        A(f"ds_read_b64_tr_b16 v[{WF+16*buf+4*b+2}:{WF+16*buf+4*b+3}], v{2+b} offset:{s*4096+1024}")
    def rd_x(s, buf): A(f"ds_read_b128 v[{XF+4*buf}:{XF+4*buf+3}], v{6+s}")
    def mf(ph, b, buf, first):
        w = f"v[{WF+16*buf+4*b}:{WF+16*buf+4*b+3}]"; x = f"v[{XF+4*buf}:{XF+4*buf+3}]"; a = f"v[{ACC+16*b}:{ACC+16*b+15}]"
        c = "0" if first else a
        if hack16:
            for h in range(2):
                r0 = ACC+16*b+8*buf+4*h
                xx = f"v[{XF+4*(buf^h)}:{XF+4*(buf^h)+3}]"
                A(f"v_mfma_f32_16x16x32_bf16 v[{r0}:{r0+3}], {w}, {xx}, v[{r0}:{r0+3}]")
            return
        A(f"v_mfma_f32_32x32x16_bf16 {a}, {w}, {x}, {c}" if ph == 1 else f"v_mfma_f32_32x32x16_bf16 {a}, {x}, {w}, {c}")
    retry = []
    nw = [0]
    def adv(): A(f"s_add_u32 s26, s26, 1\ns_cmp_eq_u32 s26, {S}\ns_cselect_b32 s26, 0, s26\ns_cselect_b32 s27, {-(S-1)*32768 & 0xffffffff}, s28\nv_add_u32 v12, 1, v12\nv_lshlrev_b32 v11, 2, s26")
    def sig(): A("ds_write_b32 v13, v12\nds_read_b32 v10, v11")
    def rdy():
        n = nw[0]; nw[0] += 1
        A(f"L_rc{n}:\ns_waitcnt lgkmcnt(0)\nv_cmp_le_u32 vcc, v10, v12\ns_cbranch_vccnz L_rw{n}\nL_rx{n}:")
        retry.append(f"L_rw{n}:\ns_sub_u32 s92, s92, 1\ns_cmp_lt_i32 s92, 0\ns_cbranch_scc1 L_rx{n}\n{'' if slc < 0 else 's_sleep %d' % slc}\nds_read_b32 v10, v11\ns_branch L_rc{n}")
    def tile(ph, first=False, extra=None, tail=None):
        extra = extra or {}
        for s in range(3):
            buf = s & 1
            for b in range(4):
                A(f"s_waitcnt lgkmcnt({6 if b == 0 else 7})")
                mf(ph, b, buf, first and s == 0)
                if b == 0: rd_x(s+1, buf ^ 1)
                rd_w(s+1, b, buf ^ 1)
                if (s, b) in extra: A(extra[(s, b)])
                if s == 2 and b == 0: adv()
        if tail == "last":
            for b in range(4): A(f"s_waitcnt lgkmcnt({6-2*b})"); mf(ph, b, 1, False)
            return
        sig()
        A("s_waitcnt lgkmcnt(8)"); mf(ph, 0, 1, False)
        for r in range(2, 6): A(f"v_add_u32 v{r}, s27, v{r}")
        A("s_waitcnt lgkmcnt(6)"); mf(ph, 1, 1, False)
        for r in range(6, 10): A(f"v_add_u32 v{r}, s27, v{r}")
        if tail == "k":
            for b in (2, 3): A(f"s_waitcnt lgkmcnt({8-2*b})"); mf(ph, b, 1, False)
            return
        rdy()
        rd_x(0, 0); rd_w(0, 0, 0)
        mf(ph, 2, 1, False)
        rd_w(0, 1, 0); rd_w(0, 2, 0)
        mf(ph, 3, 1, False)
        rd_w(0, 3, 0)
    A("s_mov_b32 s28, 32768")
    KF, SA, VF = 128, 160, 224
    A(f"s_lshl_b32 s3, s16, 12\ns_add_u32 s3, s3, {STG-RB}\nv_lshrrev_b32 v15, 5, v0\nv_lshlrev_b32 v15, 10, v15\nv_sub_u32 v15, s3, v15\nv_mov_b32 v10, 0")
    for k in range(4): A(f"v_add_u32 v{PF+k}, {STG-RB-16384}, v{6+k}\nv_add_u32 v{PF+4+k}, v{2+k}, v15")
    A(f"s_add_u32 s35, s19, s20\ns_add_u32 s35, s35, {po-D+4}\ns_and_b32 s35, s35, 3\ns_mov_b32 s31, 0")
    def piece(n, ks):
        r = f"L_pc{n}:\ns_waitcnt lgkmcnt(4)\ns_add_u32 s31, s31, 1\n"
        for k in ks:
            if k < 3: r += f"s_cmp_lg_u32 s31, {k+1}\ns_cbranch_scc1 L_pc{n}{k}\n"
            if k < 2: r += "".join(f"ds_read_b128 v[{KF+16*k+4*s}:{KF+16*k+4*s+3}], v{PF+s}\n" for s in range(4))
            else: r += "".join(f"ds_read_b64_tr_b16 v[{VF+8*b+4*(k-2)+2*h}:{VF+8*b+4*(k-2)+2*h+1}], v{PF+4+b} offset:{h*2048}\n" for b in range(4) for h in range(2))
            r += f"s_branch L_pr{n}\nL_pc{n}{k}:\n" if k < 3 else f"s_branch L_pr{n}"
        retry.append(r)
        return {(0, 1): f"s_cmp_eq_u32 s26, s35\ns_cbranch_scc1 L_pc{n}\nL_pr{n}:"}
    stamp()
    rdy()
    stamp()
    rd_x(0, 0)
    for b in range(4): rd_w(0, b, 0)
    if split:
        A(f"s_mov_b32 s29, {split}\nL_p0:")
        tile(1)
        A("s_sub_u32 s29, s29, 1\ns_cmp_lg_u32 s29, 0\ns_cbranch_scc1 L_p0")
        stamp()
    A(f"s_mov_b32 s29, {15-split}\nL_p1:")
    tile(1, extra=piece("a", range(4)))
    A("s_sub_u32 s29, s29, 1\ns_cmp_lg_u32 s29, 0\ns_cbranch_scc1 L_p1")
    tile(1, tail="k", extra={**piece("b", [3]), (0, 2): "v_mov_b32 v15, 32\nds_read_b32 v15, v15"})
    stamp()
    OB = [128, 160, 192, 224]
    for i in range(16): A(f"v_cvt_pk_bf16_f32 v{HELD+i}, v{ACC+2*i}, v{ACC+2*i+1}")
    for ks in range(8):
        A(f"v_mfma_f32_32x32x16_bf16 v[{SA}:{SA+15}], v[{KF+4*ks}:{KF+4*ks+3}], v[{HELD+4*ks}:{HELD+4*ks+3}], " + ("0" if ks == 0 else f"v[{SA}:{SA+15}]"))
        if ks < 4:
            for i in range(16+4*ks, 20+4*ks): A(f"v_cvt_pk_bf16_f32 v{HELD+i}, v{ACC+2*i}, v{ACC+2*i+1}")
    import struct
    c = struct.unpack("<I", struct.pack("<f", math.log2(math.e) / math.sqrt(128.0)))[0]
    A(f"s_mov_b32 s30, {c:#x}\ns_add_u32 s3, s34, 4096\nv_readfirstlane_b32 s31, v15\ns_nop 7\ns_cmp_eq_u32 s31, 1")
    A(f"v_max3_f32 v14, v{SA}, v{SA+1}, v{SA+2}")
    for r in range(3, 15, 2): A(f"v_max3_f32 v14, v14, v{SA+r}, v{SA+r+1}")
    A(f"v_max_f32 v14, v14, v{SA+15}\nv_mov_b32 v15, v14\ns_nop 1\nv_permlane32_swap_b32 v14, v15\ns_nop 1\nv_max_f32 v14, v14, v15\nv_mul_f32 v14, s30, v14")
    for r in range(16): A(f"v_fma_f32 v{SA+r}, v{SA+r}, s30, -v14")
    for r in range(16): A(f"v_exp_f32 v{SA+r}, v{SA+r}")
    A(f"s_nop 0\nv_add_f32 v14, v{SA}, v{SA+1}\nv_add_f32 v15, v{SA+2}, v{SA+3}")
    for r in range(4, 16, 2): A(f"v_add_f32 v14, v14, v{SA+r}\nv_add_f32 v15, v15, v{SA+r+1}")
    A("v_add_f32 v14, v14, v15\nv_mov_b32 v15, v14\ns_nop 1\nv_permlane32_swap_b32 v14, v15\ns_nop 1\nv_add_f32 v14, v14, v15\nv_rcp_f32 v14, v14\ns_nop 0")
    for r in range(16): A(f"v_mul_f32 v{SA+r}, v{SA+r}, v14")
    for i in range(8): A(f"v_cvt_pk_bf16_f32 v{PF+i}, v{SA+2*i}, v{SA+2*i+1}")
    A("s_nop 1")
    def ocv(b):
        for i in range(8): A(f"v_cvt_pk_bf16_f32 v{OB[0]+8*b+i}, v{ACC+16*b+2*i}, v{ACC+16*b+2*i+1}")
        st = lambda fl: "".join(f"buffer_store_dwordx4 v[{OB[0]+8*b+4*s}:{OB[0]+8*b+4*s+3}], v1, s[44:47], {'s3' if b > 1 else 's34'} offen offset:{(2*b+s)%4*1024} {fl}\n" for s in range(2))
        A(f"s_cbranch_scc0 L_os{b}\n" + st(o2) + f"L_or{b}:")
        retry.append(f"L_os{b}:\n" + st("sc1") + f"s_branch L_or{b}")
    for b in range(4):
        for s in range(2): A(f"v_mfma_f32_32x32x16_bf16 v[{ACC+16*b}:{ACC+16*b+15}], v[{VF+8*b+4*s}:{VF+8*b+4*s+3}], v[{PF+4*s}:{PF+4*s+3}], " + (f"v[{ACC+16*b}:{ACC+16*b+15}]" if s else "0"))
        if b >= 2: ocv(b - 2)
    ocv(2); ocv(3)
    rdy()
    for b in range(4): rd_w(0, b, 0)
    stamp()
    def ldn(p, so, fl, n, off=0): return "\n".join(f"buffer_load_dwordx4 v[{p+4*i}:{p+4*i+3}], v1, s[44:47], {so} offen offset:{off+1024*i} {fl}" for i in range(n))
    def olst(i): return [(OB[i % 4], f"s{4+2*(i%4)}", 4), (OB[i % 4] + 16, f"s{5+2*(i%4)}", 4)]
    def oload(i):
        so = 4 + 2*(i % 4)
        tst = f"v_cmp_eq_u32 vcc, -1, v8\ns_nop 0\ns_bitcmp1_b32 vcc_lo, s{so}\ns_cbranch_scc1 L_fr{i}\n"
        retry.append(f"L_fr{i}:\ns_sub_u32 s33, s33, 1\ns_cmp_lt_i32 s33, 0\ns_cbranch_scc1 L_fo{i}\nbuffer_load_dword v8, v9, s[44:47], s57 offen sc1\ns_waitcnt vmcnt(0)\n{tst}s_branch L_fo{i}")
        return f"s_lshr_b32 s101, s101, 4\ns_and_b32 s{so}, s101, 7\ns_xor_b32 s{so}, s{so}, s20\n{tst}L_fo{i}:\ns_lshl_b32 s{so}, s{so}, 16\ns_add_u32 s{so}, s{so}, s24\ns_add_u32 s{so+1}, s{so}, 4096\n" + "\n".join(ldn(p, s, psc, n) for p, s, n in olst(i))
    def mx(regs):
        r = [f"v_max3_u32 v14, v{regs[0]}, v{regs[1]}, v{regs[2]}"]
        for i in range(3, len(regs) - 1, 2): r.append(f"v_max3_u32 v14, v14, v{regs[i]}, v{regs[i+1]}")
        r.append(f"v_max_u32 v14, v14, v{regs[-1]}\nv_cmp_eq_u32 vcc, -1, v14")
        return r
    def chk(name, lst, cnt=0):
        m = mx([p+i for p, _, n in lst for i in range(4*n)])
        retry.append(f"L_rt{name}:\ns_sub_u32 s33, s33, 1\ns_cmp_lt_i32 s33, 0\ns_cbranch_scc1 L_ok{name}\n" + "\n".join(ldn(p, so, "sc1", n) for p, so, n in lst)
                     + "\ns_waitcnt vmcnt(0)\n" + "\n".join(m) + f"\ns_cbranch_vccnz L_rt{name}\ns_branch L_ok{name}")
        return [f"s_waitcnt vmcnt({cnt})"] + m + [f"s_cbranch_vccnz L_rt{name}\nL_ok{name}:"]
    def mf2(i, s, b):
        a = f"v[{ACC+16*b}:{ACC+16*b+15}]"; x = OB[i % 4] + 4*s; w = WF + 16*(s & 1) + 4*b
        A(f"v_mfma_f32_32x32x16_bf16 {a}, v[{w}:{w+3}], v[{x}:{x+3}], " + ("0" if i == 0 and s == 0 else a))
    A(f"s_mov_b32 s33, 0x40000\ns_lshl_b32 s3, s16, 13\ns_sub_u32 s56, s34, s3\ns_add_u32 s56, s56, {57344-256}\ns_sub_u32 s57, s24, s3\ns_lshl_b32 s3, s16, 8\ns_add_u32 s57, s57, s3\ns_add_u32 s57, s57, 57344")
    A("v_and_b32 v9, 7, v0\nv_lshlrev_b32 v9, 16, v9\nv_mov_b32 v7, 0")
    retry.append("L_fs:\nbuffer_store_dword v7, v13, s[44:47], s56 offen sc1\ns_branch L_fe")
    for i in range(8):
        ex = {}
        if i == 0:
            ex[(p0, 0)] = "s_cmp_eq_u32 s31, 1\ns_waitcnt vmcnt(0)\ns_cbranch_scc0 L_fs\nbuffer_store_dword v7, v13, s[44:47], s56 offen\nL_fe:"
            ex[(pf, 3)] = "buffer_load_dword v8, v9, s[44:47], s57 offen sc1"
            ex[(p1, 0)] = "s_waitcnt vmcnt(0)"
            for k in range(1, PD + 1): ex[(p1 if k == 1 else 6, k)] = oload(k)
        elif i + PD < 8: ex[(0, 1)] = oload(i + PD)
        for s in range(7):
            for b in range(4):
                A("s_waitcnt lgkmcnt(6)"); mf2(i, s, b); rd_w(s+1, b, (s & 1) ^ 1)
                if (s, b) in ex: A(ex[(s, b)])
                if s == 6 and b == 0 and i < 7: adv()
        if i == 7:
            for b in range(4): A(f"s_waitcnt lgkmcnt({6-2*b})"); mf2(i, 7, b)
            break
        sig()
        A("s_waitcnt lgkmcnt(8)"); mf2(i, 7, 0)
        for r in range(2, 6): A(f"v_add_u32 v{r}, s27, v{r}")
        A("s_waitcnt lgkmcnt(6)"); mf2(i, 7, 1)
        rdy()
        rd_w(0, 0, 0); mf2(i, 7, 2); rd_w(0, 1, 0); rd_w(0, 2, 0); mf2(i, 7, 3); rd_w(0, 3, 0)
        A(f"s_waitcnt vmcnt({8*(min(i + PD, 7) - i - 1)})")
        if i in (1, 2): stamp()
    stamp()
    OUT, SUM, IN, TMP = ACC, 128, 144, 168
    A("s_lshl_b32 s3, s16, 11\ns_sub_u32 s6, s34, s3\ns_add_u32 s6, s6, 32768\ns_add_u32 s7, s6, 4096\ns_lshl_b32 s4, s18, 19\ns_sub_u32 s5, s6, s4\ns_sub_u32 s5, s5, 2048")
    for b in range(4):
        A(f"s_cmp_eq_u32 s18, {b}\ns_cbranch_scc1 L_own{b}")
        A(f"s_sub_u32 s3, s18, {b}\ns_and_b32 s3, s3, 3\ns_lshl_b32 s3, s3, 11\ns_add_u32 s3, s3, s5")
        for i in range(8): A(f"v_cvt_pk_bf16_f32 v{HELD+8*b+i}, v{OUT+16*b+2*i}, v{OUT+16*b+2*i+1}")
        for i in range(2): A(f"buffer_store_dwordx4 v[{HELD+8*b+4*i}:{HELD+8*b+4*i+3}], v1, s[44:47], s3 offen offset:{1024*i} sc1")
        A(f"s_branch L_nxt{b}\nL_own{b}:")
        for r in range(16): A(f"v_mov_b32 v{SUM+r}, v{OUT+16*b+r}")
        A(f"L_nxt{b}:\ns_add_u32 s5, s5, {1<<19}")
    lst = [(IN, "s6", 4), (IN+16, "s7", 2)]
    for p, so, n in lst: A(ldn(p, so, "sc1", n))
    A("v_and_b32 v11, 31, v0\nv_lshrrev_b32 v12, 5, v0\nv_lshlrev_b32 v12, 4, v12\nv_lshl_add_u32 v12, v11, 12, v12\ns_mov_b32 s30, 0xffff0000")
    A("s_lshl_b32 s3, s23, 17\ns_lshl_b32 s4, s17, 11\ns_add_u32 s3, s3, s4\ns_lshl_b32 s4, s20, 8\ns_add_u32 s3, s3, s4\ns_lshl_b32 s4, s18, 6\ns_add_u32 s3, s3, s4")
    stamp()
    A("\n".join(chk("c", lst)))
    stamp()
    for i in range(24): A(f"v_lshlrev_b32 v{TMP+i}, 16, v{IN+i}\nv_and_b32 v{IN+i}, s30, v{IN+i}")
    for k in range(3):
        for i in range(8): A(f"v_add_f32 v{SUM+2*i}, v{SUM+2*i}, v{TMP+8*k+i}\nv_add_f32 v{SUM+2*i+1}, v{SUM+2*i+1}, v{IN+8*k+i}")
    for i in range(8): A(f"v_cvt_pk_bf16_f32 v{WF+i}, v{SUM+2*i}, v{SUM+2*i+1}")
    A(f"buffer_store_dwordx4 v[{WF}:{WF+3}], v12, s[12:15], s3 offen {osc}\nbuffer_store_dwordx4 v[{WF+4}:{WF+7}], v12, s[12:15], s3 offen offset:32 {osc}")
    if stamps or probe is not None: A("s_waitcnt vmcnt(0)")
    stamp()
    stamp_store(0)
    if probe is not None:
        if pwg >= 0: A(f"s_cmp_lg_u32 s2, {pwg}\ns_cbranch_scc1 L_end")
        if probe == -1: A("s_mov_b32 s62, s90")
        A("s_add_u32 s62, s62, 5000\nL_spin:\ns_sleep 4\ns_memrealtime s[64:65]\ns_waitcnt lgkmcnt(0)\ns_sub_u32 s64, s64, s62\ns_cmp_lt_i32 s64, 0\ns_cbranch_scc1 L_spin")
    A("L_end:\ns_endpgm")
    for r in retry: A(r)
    o.append(f'''.section .rodata,"a"
.p2align 6
.amdhsa_kernel {NAME}_kernel
  .amdhsa_next_free_vgpr 256
  .amdhsa_next_free_sgpr 102
  .amdhsa_accum_offset 256
  .amdhsa_group_segment_fixed_size 0
  .amdhsa_kernarg_size 104
  .amdhsa_user_sgpr_count 2
  .amdhsa_user_sgpr_kernarg_segment_ptr 1
  .amdhsa_system_sgpr_workgroup_id_x 1
.end_amdhsa_kernel''')
    return "\n".join(o) + "\n"

if __name__ == "__main__":
    kw = {}
    out = sys.argv[1]
    for a in sys.argv[2:]:
        k, v = a.split("=")
        kw[k] = int(v) if v.lstrip("-").isdigit() else v.replace('+', ' ')
    open(out, "w").write(gen(**kw))
```
